```python
import torch

def _softmax(x, axis=-1):
    return torch.softmax(x, dim=axis)
def _gelu(x):
    return torch.nn.functional.gelu(x, approximate="tanh")
def _silu(x):
    return torch.nn.functional.silu(x)
def _sigmoid(x):
    return torch.sigmoid(x)
def _layernorm(x, axis=-1, eps=1e-5):
    m = x.mean(dim=axis, keepdim=True)
    v = x.var(dim=axis, keepdim=True, unbiased=False)
    return (x - m) / torch.sqrt(v + eps)
def _scatter_add(tgt, idx, src, axis=0):
    return tgt.clone().index_add_(axis, idx, src)
def _segment_sum(src, seg, n):
    out = torch.zeros((n,) + src.shape[1:], dtype=src.dtype)
    return out.index_add_(0, seg, src)
def _pad(x, pw):
    flat = tuple(v for pair in reversed(pw) for v in pair)
    return torch.nn.functional.pad(x, flat)

kernel_name = 'gated_mix__linear_attn_block__glu_gated_reglu__prompt'

def setup_inputs():

    _w = (lambda a: (lambda t: t.to(torch.bfloat16) if t.is_floating_point() else t)(torch.as_tensor(a)))
    def _A_setup():
        B, S, D = 1, 2048, 448
        return {
            "x": _w((lambda *s: torch.randn(*s, dtype=torch.bfloat16) * 0.05)(B, S, D)),
            "wqkv": _w((lambda *s: torch.randn(*s, dtype=torch.bfloat16) * 0.8)(D, 3 * D)),
            "wo": _w((lambda *s: torch.randn(*s, dtype=torch.bfloat16) * 0.05)(D, D)),
        }
    _A_in = _A_setup()

    def _B_setup():
        B, S, D, F = 1, 2048, 448, 1792
        return {
            "x": _w((lambda *s: torch.randn(*s, dtype=torch.bfloat16) * 0.05)(B, S, D)),
            "W_gate": _w((lambda *s: torch.randn(*s, dtype=torch.bfloat16) * 1.6)(D, F) * (2.0 / D) ** 0.5),
            "W_up": _w((lambda *s: torch.randn(*s, dtype=torch.bfloat16) * 1.6)(D, F) * (2.0 / D) ** 0.5),
            "W_down": _w((lambda *s: torch.randn(*s, dtype=torch.bfloat16) * 1.6)(F, D) * (1.0 / F) ** 0.5),
        }
    _B_in = _B_setup()

    return {
        "A_x": _A_in["x"],
        "A_wqkv": _A_in["wqkv"],
        "A_wo": _A_in["wo"],
        "B_x": _B_in["x"],
        "B_W_gate": _B_in["W_gate"],
        "B_W_up": _B_in["W_up"],
        "B_W_down": _B_in["W_down"],
        "gate_w": _w((lambda *s: torch.randn(*s, dtype=torch.bfloat16) * 0.05)(448) * 16.0),
    }

def reference(A_x, A_wqkv, A_wo, B_x, B_W_gate, B_W_up, B_W_down, gate_w):
    def _A_ref(x, wqkv, wo):
        B, S, D = x.shape
        H = 16; Dh = D // H
        qkv = (lambda x, *d: x.permute(*d))((x @ wqkv).reshape(B, S, 3, H, Dh), 2, 0, 3, 1, 4)
        q, k, v = qkv[0], qkv[1], qkv[2]
        phi = lambda t: torch.where(t > 0, t + 1, torch.exp(t)) + 1e-6
        pq, pk = phi(q), phi(k)
        kv = torch.einsum("bhsd,bhse->bhde", pk, v)
        z = torch.einsum("bhsd->bhd", pk)
        num = torch.einsum("bhqd,bhde->bhqe", pq, kv)
        den = torch.einsum("bhqd,bhd->bhq", pq, z)[..., None] + 1e-6
        o = num / den
        return (lambda x, *d: x.permute(*d))(o, 0, 2, 1, 3).reshape(B, S, D) @ wo

    def _B_ref(x, W_gate, W_up, W_down):
        gate = torch.einsum("bsd,df->bsf", x, W_gate)
        up = torch.einsum("bsd,df->bsf", x, W_up)
        gate = gate * (lambda x, dt: x.to(dt))(gate > 0, gate.dtype)
        h = gate * up
        return torch.einsum("bsf,fd->bsd", h, W_down)

    x = A_x
    g = _sigmoid((x * gate_w).sum(-1, keepdims=True))
    a = _A_ref(x, A_wqkv, A_wo)
    b = _B_ref(x, B_W_gate, B_W_up, B_W_down)
    return g * a + (1 - g) * b
```

```python
import sys, os
NAME = "gated_mix__linear_attn_block__glu_gated_reglu__prompt"
MB = 1 << 20
WS_A2 = 0
WS_KVP = 10 * MB
WS_OMG = 11 * MB
WS_FLAG = 12 * MB
WS_STAMP = 14 * MB
WS_SIZE = 16 * MB
FH, FKV, FO, NFLAG = 0, 728, 984, 1240
SPIN_MAX = 400000
TB = 72 * 1024

class Opt:
    stamps = False
    def __init__(self, **kw):
        self.__dict__.update(kw)

class Asm:
    def __init__(self, opt):
        self.l = []; self.opt = opt; self.nlab = 0
    def __call__(self, s):
        self.l.append("    " + s)
    def label(self, s): self.l.append(s + ":")
    def newlab(self, p):
        self.nlab += 1
        return f"L_{p}_{self.nlab}"
    def many(self, lst):
        for s in lst: self(s)
    def nop(self, n):
        while n > 0:
            k = min(n, 16); self(f"s_nop {k-1}"); n -= k
    def stamp(self, i):
        if self.opt.stamps:
            self(f"s_memrealtime s[{S_ST+2*i}:{S_ST+2*i+1}]")
    def weave(self, mf, fill, per=2, start=0):
        fill = list(fill); p = 0
        for i, m in enumerate(mf):
            self(m)
            if i >= start:
                n = 0
                while p < len(fill) and n < per:
                    f = fill[p]; p += 1
                    if isinstance(f, (tuple, list)):
                        self.many(f); n += len(f)
                    else:
                        self(f); n += 1
        while p < len(fill):
            f = fill[p]; p += 1
            if isinstance(f, (tuple, list)): self.many(f)
            else: self(f)

def vr(b, n): return f"v[{b}:{b+n-1}]"
def ar(b, n): return f"a[{b}:{b+n-1}]"
def sr(b, n): return f"s[{b}:{b+n-1}]"

P_X, P_QKV, P_WO, P_BX, P_WG, P_WU, P_WD, P_GW = 4, 6, 8, 10, 12, 14, 16, 18
P_OUT, P_DBG, P_WS = 20, 22, 24
R_X, R_A, R_B, R_D, R_O, R_W, R_OUT = 28, 32, 36, 40, 44, 48, 52
S_WV, S_R, S_CT, S_HALF, S_C, S_KC, S_SX, S_SW = 56, 57, 58, 59, 60, 61, 62, 63
S_T0, S_T1, S_T2, S_T3 = 64, 65, 66, 67
S_MX, S_MW, S_MB, S_CNT = 68, 69, 70, 71
S_C2, S_MASK = 72, 74
S_K7 = 76
S_RT, S_HP = 57, 58
S_ST = 84

def srd(A, r, p, size):
    A(f"s_mov_b32 s{r}, s{p}"); A(f"s_mov_b32 s{r+1}, s{p+1}")
    A(f"s_mov_b32 s{r+2}, {size}"); A(f"s_mov_b32 s{r+3}, 0x20000")

def mod7(A, s):
    A(f"s_mul_i32 s{S_T3}, s{s}, 37"); A(f"s_lshr_b32 s{S_T3}, s{S_T3}, 8")
    A(f"s_mul_i32 s{S_T3}, s{S_T3}, 7"); A(f"s_sub_u32 s{s}, s{s}, s{S_T3}")

def spin(A, vaddr, vtmp, nl, srdw=R_W, first_loaded=False):
    L = A.newlab("spin"); D = A.newlab("spun")
    A(f"s_mov_b64 exec, {hex((1 << nl) - 1)}")
    A(f"s_mov_b32 s{S_CNT}, 0")
    A.label(L)
    A(f"buffer_load_dword v{vtmp}, v{vaddr}, {sr(srdw,4)}, 0 offen sc1")
    A(f"s_add_u32 s{S_CNT}, s{S_CNT}, 1")
    A(f"s_cmp_gt_u32 s{S_CNT}, {SPIN_MAX}")
    A("s_waitcnt vmcnt(0)")
    A(f"s_cbranch_scc1 {D}")
    A(f"v_cmp_ne_u32 vcc, 1, v{vtmp}")
    A(f"s_cbranch_vccnz {L}")
    A.label(D)
    A("s_mov_b64 exec, -1")

def go_check(A, vgo, vz):
    L = A.newlab("go"); D = A.newlab("gone")
    A(f"s_mov_b32 s{S_CNT}, 0")
    A.label(L)
    A(f"v_cmp_ne_u32 vcc, 1, v{vgo}")
    A(f"s_cbranch_vccz {D}")
    A(f"global_load_dword v{vgo}, v{vz}, {sr(P_DBG,2)} sc1")
    A(f"s_add_u32 s{S_CNT}, s{S_CNT}, 1")
    A(f"s_cmp_gt_u32 s{S_CNT}, {SPIN_MAX}")
    A("s_waitcnt vmcnt(0)")
    A(f"s_cbranch_scc0 {L}")
    A.label(D)

def set_flag(A, sidx, va, vb):
    A(f"s_lshl_b32 s{S_T3}, s{sidx}, 7")
    A(f"s_add_u32 s{S_T3}, s{S_T3}, {WS_FLAG}")
    A(f"v_mov_b32 v{va}, 0"); A(f"v_mov_b32 v{vb}, 1")
    A("s_mov_b64 exec, 1")
    A(f"buffer_store_dword v{vb}, v{va}, {sr(R_W,4)}, s{S_T3} offen sc1")
    A("s_mov_b64 exec, -1")

def write_stamps(A):
    if not A.opt.stamps: return
    A("s_waitcnt lgkmcnt(0)")
    A(f"s_lshl_b32 s{S_T0}, s2, 2"); A(f"s_add_u32 s{S_T0}, s{S_T0}, s{S_WV}"); A(f"s_lshl_b32 s{S_T0}, s{S_T0}, 6")
    A(f"s_add_u32 s{S_T0}, s{S_T0}, {WS_STAMP}")
    A("v_mov_b32 v1, 0")
    for i in range(12):
        A(f"v_mov_b32 v{4+i}, s{S_ST+2*i}" if i < 9 else f"v_mov_b32 v{4+i}, 0")
    A("s_mov_b64 exec, 1")
    for i in range(3):
        A(f"buffer_store_dwordx4 {vr(4+4*i,4)}, v1, {sr(R_W,4)}, s{S_T0} offen offset:{16*i}")
    A("s_mov_b64 exec, -1")

def prologue(A):
    A.stamp(0)
    A("s_cmp_ge_u32 s2, 256"); A("s_cbranch_scc1 L_exit")
    A(f"s_load_dwordx16 {sr(4,16)}, s[0:1], 0")
    A(f"s_load_dwordx4 {sr(20,4)}, s[0:1], 64")
    A(f"s_load_dwordx2 {sr(24,2)}, s[0:1], 80")
    if A.opt.stamps:
        for i in range(1, 9): A(f"s_mov_b64 s[{S_ST+2*i}:{S_ST+2*i+1}], 0")
    A("v_lshrrev_b32 v1, 6, v0")
    A("v_and_b32 v0, 63, v0")
    A(f"v_readfirstlane_b32 s{S_WV}, v1")
    A(f"s_lshr_b32 s{S_T0}, s2, 3")
    A(f"s_bfe_u32 s{S_T1}, s2, 0x20001")
    A(f"s_and_b32 s{S_HALF}, s2, 1")
    A(f"s_cmp_ge_u32 s{S_T0}, 11"); A("s_cbranch_scc1 L_dec_ffn")
    A(f"s_cmp_ge_u32 s{S_T0}, 3"); A("s_cbranch_scc1 L_att")
    A(f"s_mul_i32 s{S_CT}, s{S_T1}, 3"); A(f"s_add_u32 s{S_CT}, s{S_CT}, s{S_T0}")
    A(f"s_cmp_ge_u32 s{S_CT}, 7"); A("s_cbranch_scc1 L_init")
    A(f"s_mov_b32 s{S_R}, 12")
    A(f"s_add_u32 s{S_KC}, s{S_CT}, 4")
    A(f"s_mov_b32 s{S_C2}, 7")
    A("s_branch L_ffn")
    A.label("L_dec_ffn")
    A(f"s_sub_u32 s{S_T0}, s{S_T0}, 11")
    A(f"s_mul_i32 s{S_T2}, s{S_T0}, 37"); A(f"s_lshr_b32 s{S_T2}, s{S_T2}, 8")
    A(f"s_mul_i32 s{S_T3}, s{S_T2}, 7"); A(f"s_sub_u32 s{S_CT}, s{S_T0}, s{S_T3}")
    A(f"s_mul_i32 s{S_R}, s{S_T1}, 3"); A(f"s_add_u32 s{S_R}, s{S_R}, s{S_T2}")
    A(f"s_mul_i32 s{S_C2}, s{S_T2}, 5")
    A(f"s_lshr_b32 s{S_KC}, s{S_C2}, 1")
    A(f"s_add_u32 s{S_KC}, s{S_KC}, s{S_CT}"); A(f"s_add_u32 s{S_KC}, s{S_KC}, s{S_T1}")
    A(f"s_add_u32 s{S_C2}, s{S_C2}, s{S_T1}")

SLOT = 53248; XO, GO_, UO = 0, 20480, 36864
def ffn(A):
    opt = A.opt
    A.label("L_ffn")
    mod7(A, S_KC)
    if opt.norot: A(f"s_mov_b32 s{S_KC}, 0")
    A(f"s_mul_i32 s{S_C}, s{S_HALF}, 7"); A(f"s_add_u32 s{S_C}, s{S_C}, s{S_CT}")
    VX = [1, 2, 3, 4, 5]; VW = [6, 7, 8, 9]
    T = [40, 41, 42, 43, 44, 45]
    A(f"v_lshrrev_b32 v{T[0]}, 3, v0")
    A(f"v_lshrrev_b32 v{T[1]}, 4, v0")
    A(f"v_and_b32 v{T[2]}, 7, v0")
    A(f"v_xor_b32 v{T[2]}, v{T[2]}, v{T[1]}")
    A(f"s_and_b32 s{S_T0}, s{S_WV}, 1"); A(f"s_lshl_b32 s{S_T0}, s{S_T0}, 2")
    A(f"v_xor_b32 v{T[2]}, s{S_T0}, v{T[2]}")
    A(f"s_mul_i32 s{S_T0}, s{S_R}, 160"); A(f"s_mul_i32 s{S_T1}, s{S_WV}, 40"); A(f"s_add_u32 s{S_T0}, s{S_T0}, s{S_T1}")
    A(f"v_add_u32 v{T[3]}, s{S_T0}, v{T[0]}")
    A(f"v_mul_u32_u24 v{T[3]}, 896, v{T[3]}")
    A(f"v_lshl_add_u32 v{VX[0]}, v{T[2]}, 4, v{T[3]}")
    A(f"v_xor_b32 v{T[4]}, 64, v{VX[0]}")
    A(f"v_add_u32 v{VX[1]}, {7168-1024}, v{T[4]}")
    A(f"v_add_u32 v{VX[2]}, {2*(7168-1024)}, v{VX[0]}")
    A(f"v_add_u32 v{VX[3]}, {3*(7168-1024)}, v{T[4]}")
    A(f"v_add_u32 v{VX[4]}, {4*7168}, v{VX[0]}")
    A(f"v_and_b32 v{T[2]}, 15, v0")
    A(f"v_lshlrev_b32 v{T[4]}, 2, v{T[1]}")
    A(f"v_xor_b32 v{T[2]}, v{T[2]}, v{T[4]}")
    A(f"s_lshl_b32 s{S_T0}, s{S_WV}, 4")
    A(f"v_add_u32 v{T[3]}, s{S_T0}, v{T[1]}")
    A(f"v_mul_u32_u24 v{T[3]}, 3584, v{T[3]}")
    A(f"v_lshl_add_u32 v{VW[0]}, v{T[2]}, 4, v{T[3]}")
    A(f"s_lshl_b32 s{S_T0}, s{S_C}, 8")
    A(f"v_add_u32 v{VW[0]}, s{S_T0}, v{VW[0]}")
    for i in range(1, 4): A(f"v_add_u32 v{VW[i]}, {i*(4*3584-1024)}, v{VW[0]}")
    A(f"s_mul_i32 s{S_MX}, s{S_WV}, 5120")
    A(f"s_lshl_b32 s{S_MW}, s{S_WV}, 12")
    A("s_waitcnt lgkmcnt(0)")
    srd(A, R_X, P_X, 2048*896); srd(A, R_A, P_WG, 448*3584); srd(A, R_B, P_WU, 448*3584)
    def dma_stage(st):
        sb = (st % 3) * SLOT
        f = []
        f.append((f"s_lshl_b32 s{S_SX}, s{S_KC}, 7", f"s_add_u32 m0, s{S_MX}, {sb+XO}"))
        f.append((f"s_mul_i32 s{S_SW}, s{S_KC}, {64*3584}", f"buffer_load_dwordx4 v{VX[0]}, {sr(R_X,4)}, s{S_SX} offen lds"))
        for i in range(1, 4): f.append(f"buffer_load_dwordx4 v{VX[i]}, {sr(R_X,4)}, s{S_SX} offen offset:{1024*i} lds")
        f.append((f"s_add_u32 m0, s{S_MX}, {sb+XO+4096}", f"s_add_u32 s{S_KC}, s{S_KC}, 1", f"buffer_load_dwordx4 v{VX[4]}, {sr(R_X,4)}, s{S_SX} offen lds"))
        f.append((f"s_add_u32 m0, s{S_MW}, {sb+GO_}", f"s_cmp_eq_u32 s{S_KC}, 7", f"s_cselect_b32 s{S_KC}, 0, s{S_KC}"))
        for i in range(4): f.append(f"buffer_load_dwordx4 v{VW[i]}, {sr(R_A,4)}, s{S_SW} offen offset:{1024*i} lds")
        f.append((f"s_add_u32 m0, s{S_MW}, {sb+UO}", "s_nop 0", f"buffer_load_dwordx4 v{VW[0]}, {sr(R_B,4)}, s{S_SW} offen lds"))
        for i in range(1, 4): f.append(f"buffer_load_dwordx4 v{VW[i]}, {sr(R_B,4)}, s{S_SW} offen offset:{1024*i} lds")
        return f
    for st in range(3): A.weave([], dma_stage(st))
    A.stamp(1)
    srd(A, R_D, P_WD, 1792*896); srd(A, R_O, P_WO, 448*896); srd(A, R_W, P_WS, WS_SIZE); srd(A, R_OUT, P_OUT, 2048*896)
    VXR = [[10 + 4*sl + s for s in range(4)] for sl in range(3)]
    VWR = [22, 23, 24]
    A(f"v_and_b32 v{T[2]}, 31, v0")
    A(f"v_lshrrev_b32 v{T[3]}, 5, v0")
    A(f"v_bfe_u32 v{T[4]}, v0, 1, 3")
    A(f"v_xor_b32 v{T[4]}, v{T[4]}, v{T[3]}")
    A(f"v_lshlrev_b32 v{T[4]}, 4, v{T[4]}")
    A(f"v_lshl_add_u32 v{VXR[0][0]}, v{T[2]}, 7, v{T[4]}")
    for s in range(1, 4): A(f"v_xor_b32 v{VXR[0][s]}, {32*s}, v{VXR[0][0]}")
    for sl in (1, 2):
        for s in range(4): A(f"v_add_u32 v{VXR[sl][s]}, {sl*SLOT}, v{VXR[0][s]}")
    A(f"v_bfe_u32 v{T[2]}, v0, 2, 2")
    A(f"v_lshl_add_u32 v{T[4]}, v{T[3]}, 3, v{T[2]}")
    A(f"v_lshlrev_b32 v{T[4]}, 8, v{T[4]}")
    A(f"v_xor_b32 v{T[5]}, s{S_WV}, v{T[2]}")
    A(f"v_lshl_add_u32 v{T[4]}, v{T[5]}, 6, v{T[4]}")
    A(f"v_bfe_u32 v{T[5]}, v0, 4, 1")
    A(f"v_lshl_add_u32 v{T[4]}, v{T[5]}, 5, v{T[4]}")
    A(f"v_and_b32 v{T[5]}, 3, v0")
    A(f"v_lshl_add_u32 v{T[4]}, v{T[5]}, 3, v{T[4]}")
    for sl in range(3): A(f"v_add_u32 v{VWR[sl]}, {sl*SLOT+GO_}, v{T[4]}")
    VB = [25, 26, 27, 28]
    VBR = [[29, 30, 31, 32], [33, 34, 35, 36]]
    VA2 = [46, 47, 48, 49, 50]
    VST = 51; VGO = 52; VZ = 53; VFL = 54; VFT = 55; VOM = [56, 57, 58, 59, 60]
    A(f"v_and_b32 v{T[2]}, 7, v0")
    A(f"v_lshlrev_b32 v{T[4]}, 1, v{T[1]}")
    A(f"v_xor_b32 v{T[2]}, v{T[2]}, v{T[4]}")
    A(f"v_mul_u32_u24 v{T[4]}, 896, v{T[0]}")
    A(f"v_lshl_add_u32 v{VB[0]}, v{T[2]}, 4, v{T[4]}")
    A(f"s_lshl_b32 s{S_T0}, s{S_CT}, 7")
    A(f"v_add_u32 v{VB[0]}, s{S_T0}, v{VB[0]}")
    for i in range(1, 4): A(f"v_add_u32 v{VB[i]}, {i*(7168-1024)}, v{VB[0]}")
    A(f"s_mul_i32 s{S_MB}, s{S_WV}, 12288")
    A(f"v_bfe_u32 v{T[2]}, v0, 2, 3")
    A(f"v_lshl_add_u32 v{T[4]}, v{T[3]}, 4, v{T[2]}")
    A(f"v_lshlrev_b32 v{T[4]}, 7, v{T[4]}")
    A(f"v_lshrrev_b32 v{T[2]}, 1, v{T[2]}")
    A(f"v_xor_b32 v{T[2]}, s{S_WV}, v{T[2]}")
    A(f"v_lshl_add_u32 v{T[4]}, v{T[2]}, 5, v{T[4]}")
    A(f"v_lshl_add_u32 v{T[4]}, v{T[5]}, 3, v{T[4]}")
    for u in range(4):
        A(f"v_xor_b32 v{VBR[0][u]}, {32*u}, v{T[4]}")
        A(f"v_add_u32 v{VBR[0][u]}, s{S_MB}, v{VBR[0][u]}")
        A(f"v_add_u32 v{VBR[1][u]}, {2*SLOT}, v{VBR[0][u]}")
    A(f"s_lshl_b32 s{S_T0}, s{S_R}, 1"); A(f"s_add_u32 s{S_T0}, s{S_T0}, s{S_HALF}"); A(f"s_mul_i32 s{S_T0}, s{S_T0}, {5*TB}")
    A(f"v_lshlrev_b32 v{VA2[0]}, 4, v0"); A(f"v_add_u32 v{VA2[0]}, s{S_T0}, v{VA2[0]}")
    for i in range(1, 5): A(f"v_add_u32 v{VA2[i]}, {i*TB}, v{VA2[0]}")
    A(f"v_bfe_u32 v{T[2]}, v0, 4, 1"); A(f"v_mul_u32_u24 v{T[2]}, {TB}, v{T[2]}")
    A(f"v_and_b32 v{T[4]}, 15, v0"); A(f"v_lshl_add_u32 v{T[4]}, v{T[3]}, 4, v{T[4]}")
    A(f"v_lshl_add_u32 v{VST}, v{T[4]}, 4, v{T[2]}")
    A(f"s_mul_i32 s{S_T0}, s{S_R}, 720"); A(f"s_lshl_b32 s{S_T1}, s{S_C}, 2"); A(f"s_add_u32 s{S_T0}, s{S_T0}, s{S_T1}")
    A(f"s_add_u32 s{S_T0}, s{S_T0}, s{S_WV}"); A(f"s_lshl_b32 s{S_T0}, s{S_T0}, 10")
    A(f"v_add_u32 v{VST}, s{S_T0}, v{VST}")
    A(f"v_mov_b32 v{VZ}, 0")
    A(f"s_lshl_b32 s{S_T0}, s{S_CT}, 1"); A(f"s_add_u32 s{S_C2}, s{S_C2}, s{S_T0}")
    A(f"s_cmp_ge_u32 s{S_C2}, 14"); A(f"s_cselect_b32 s{S_T0}, 14, 0"); A(f"s_sub_u32 s{S_C2}, s{S_C2}, s{S_T0}")
    if opt.norot: A(f"s_mov_b32 s{S_C2}, 0")
    S_CB = S_HALF + 0
    S_BC = 73
    A(f"s_mov_b32 s{S_BC}, s{S_C2}")

    REG_ORDER = [1, 2, 0]
    def unit(j):
        jj = j % 9
        return REG_ORDER[jj // 3], jj % 3
    def dma_b2(j):
        rg, ix = unit(j)
        f = []
        if j < 14:
            f.append((f"s_lshl_b32 s{S_SW}, s{S_BC}, 2", f"s_add_u32 s{S_SW}, s{S_SW}, s{S_WV}", f"s_mul_i32 s{S_SW}, s{S_SW}, {32*896}"))
            f.append((f"s_add_u32 m0, s{S_MB}, {rg*SLOT+ix*4096}", f"s_add_u32 s{S_BC}, s{S_BC}, 1"))
            f.append((f"s_cmp_eq_u32 s{S_BC}, 14", f"s_cselect_b32 s{S_BC}, 0, s{S_BC}"))
            R = R_D
        else:
            f.append((f"s_mul_i32 s{S_SW}, s{S_WV}, {4*28*896}", f"s_add_u32 m0, s{S_MB}, {rg*SLOT+ix*4096}", f"s_add_u32 s{S_SW}, s{S_SW}, {(j-14)*28*896}"))
            R = R_O
        for i in range(4): f.append(f"buffer_load_dwordx4 v{VB[i]}, {sr(R,4)}, s{S_SW} offen offset:{1024*i} lds")
        return f
    def rd_b2(j, dst):
        rg, ix = unit(j)
        st = 1 if rg == 2 else 0
        off = (0 if rg == 2 else rg * SLOT) + ix * 4096
        return [f"ds_read_b64_tr_b16 {ar(dst+4*u+2*rd,2)}, v{VBR[st][u]} offset:{off+rd*1024}" for u in range(4) for rd in range(2)]

    ACC = lambda b, mat: 64 + (b * 2 + mat) * 16
    FR = [0, 28]
    def reads(st, s, buf):
        sl = st % 3; o = FR[buf]
        g = [f"ds_read_b64_tr_b16 {ar(o+20+2*rd,2)}, v{VWR[sl]} offset:{s*4096+rd*1024}" for rd in range(2)]
        u = [f"ds_read_b64_tr_b16 {ar(o+24+2*rd,2)}, v{VWR[sl]} offset:{16384+s*4096+rd*1024}" for rd in range(2)]
        x = [f"ds_read_b128 {ar(o+4*b,4)}, v{VXR[sl][s]} offset:{b*4096}" for b in range(5)]
        return g + [x[0]] + u + x[1:]
    def mfmas(first, buf):
        o = FR[buf]; r = []
        for b in range(5):
            for mat in range(2):
                d = vr(ACC(b, mat), 16)
                r.append(f"v_mfma_f32_32x32x16_bf16 {d}, {ar(o+20+4*mat,4)}, {ar(o+4*b,4)}, {'0' if first else d}")
        return r
    A("s_waitcnt vmcnt(26)")
    A("s_barrier")
    A.stamp(2)
    A.many(reads(0, 0, 0))
    pend = []
    ks = 0
    for st in range(7):
        for s in range(4):
            buf = ks & 1
            if s == 3:
                if st < 6:
                    n = {0: 13, 1: 13, 2: 13, 3: 13, 4: 14, 5: 13}[st]
                    if st == 4: n = 14
                    if st == 5: n = 12
                    A(f"s_waitcnt vmcnt({n}) lgkmcnt(0)")
                else:
                    A("s_waitcnt lgkmcnt(0)")
                A("s_barrier")
                assert not pend
                if st + 3 < 7:
                    pend = dma_stage(st + 3)
                    if st == 3: pend.append(f"global_load_dword v{VGO}, v{VZ}, {sr(P_DBG,2)} sc1")
                else:
                    pend = sum((dma_b2(3 * (st - 4) + i) for i in range(3)), [])
            else:
                A("s_waitcnt lgkmcnt(0)")
            nxt = reads(st, s + 1, buf ^ 1) if s < 3 else (reads(st + 1, 0, buf ^ 1) if st < 6 else [])
            mf = mfmas(ks == 0, buf)
            left = {3: 4, 0: 3, 1: 2, 2: 1}[s]
            if st == 6 and s == 3: left = 1
            nd = -(-len(pend) // left)
            dm, pend = pend[:nd], pend[nd:]
            A.weave(mf[:5], nxt, per=2)
            A.weave(mf[5:], dm, per=1)
            ks += 1
    A.stamp(3)
    A.nop(12)
    TP = 224
    for b in range(5):
        g, u = ACC(b, 0), ACC(b, 1)
        t = TP + 8 * (b & 1)
        for i in range(16): A(f"v_max_f32 v{g+i}, 0, v{g+i}")
        for i in range(16): A(f"v_mul_f32 v{g+i}, v{g+i}, v{u+i}")
        for i in range(8): A(f"v_cvt_pk_bf16_f32 v{t+i}, v{g+2*i}, v{g+2*i+1}")
        A(f"s_mov_b32 s{S_T0}, {2*b*TB}")
        for jj in range(2):
            A(f"buffer_store_dwordx4 {vr(t+4*jj,4)}, v{VST}, {sr(R_W,4)}, s{S_T0} offen offset:{512*jj} sc1")
    HO = 56
    A("s_waitcnt vmcnt(10)")
    for j in range(9):
        A.many(rd_b2(j, HO + 16 * j))
        if j % 3 == 2:
            A("s_waitcnt lgkmcnt(0)")
            if j == 2:
                for jn in range(9, 12): A.weave([], dma_b2(jn))
    go_check(A, VGO, VZ)
    A("s_waitcnt vmcnt(12)")
    A.stamp(4)
    A(f"s_mul_i32 s{S_T0}, s{S_R}, 14"); A(f"s_add_u32 s{S_T0}, s{S_T0}, s{S_C}"); A(f"s_lshl_b32 s{S_T0}, s{S_T0}, 2"); A(f"s_add_u32 s{S_T0}, s{S_T0}, s{S_WV}")
    set_flag(A, S_T0, VFL, VFT)
    for jn in range(12, 18): A.weave([], dma_b2(jn))
    A(f"s_mul_i32 s{S_T0}, s{S_R}, 56"); A(f"s_add_u32 s{S_T0}, s{S_T0}, s{S_WV}"); A(f"s_lshl_b32 s{S_T0}, s{S_T0}, 7"); A(f"s_add_u32 s{S_T0}, s{S_T0}, {WS_FLAG+FH*128}")
    A(f"v_lshlrev_b32 v{VFL}, 9, v0"); A(f"v_add_u32 v{VFL}, s{S_T0}, v{VFL}")
    spin(A, VFL, VFT, 14)
    A.stamp(5)
    RING = [("v", 144 + 20 * i) for i in range(5)] + [("a", 0), ("a", 20), ("a", 232)]
    NR = len(RING)
    def a2reg(j, blk):
        k, b = RING[j % NR]
        return vr(b + 4 * blk, 4) if k == "v" else ar(b + 4 * blk, 4)
    def ld_a2(j):
        f = []
        if j < 14:
            f.append((f"s_lshl_b32 s{S_SX}, s{S_C2}, 2", f"s_add_u32 s{S_SX}, s{S_SX}, s{S_WV}", f"s_lshl_b32 s{S_SX}, s{S_SX}, 10"))
            f.append((f"s_add_u32 s{S_C2}, s{S_C2}, 1", f"s_cmp_eq_u32 s{S_C2}, 14", f"s_cselect_b32 s{S_C2}, 0, s{S_C2}"))
        else:
            f.append((f"s_lshl_b32 s{S_SX}, s{S_WV}, 12", f"s_add_u32 s{S_SX}, s{S_SX}, {(56+j-14)*1024}"))
        for blk in range(5):
            f.append(f"buffer_load_dwordx4 {a2reg(j, blk)}, v{VA2[blk]}, {sr(R_W,4)}, s{S_SX} offen sc1")
        return f
    ACC2 = lambda u, blk: 64 + (u * 5 + blk) * 4
    WB = [200, 216]
    def wreg(j, u): return ar((HO + 16 * j if j < 9 else WB[j & 1]) + 4 * u, 4)
    def mf2(j):
        r = []
        for blk in range(5):
            for u in range(4):
                d = vr(ACC2(u, blk), 4)
                r.append(f"v_mfma_f32_16x16x32_bf16 {d}, {wreg(j,u)}, {a2reg(j,blk)}, {'0' if j == 0 else d}")
        return r
    A(f"s_lshl_b32 s{S_T0}, s{S_R}, 1"); A(f"s_add_u32 s{S_T0}, s{S_T0}, s{S_HALF}"); A(f"s_mul_i32 s{S_T0}, s{S_T0}, 80")
    A(f"s_lshr_b32 s{S_T1}, s{S_T0}, 6")
    A(f"v_and_b32 v{T[0]}, 1, v0"); A(f"v_add_u32 v{T[0]}, s{S_T1}, v{T[0]}"); A(f"v_min_u32 v{T[0]}, 31, v{T[0]}")
    A(f"v_lshrrev_b32 v{T[1]}, 1, v0"); A(f"s_lshl_b32 s{S_T1}, s{S_WV}, 1"); A(f"v_add_u32 v{T[1]}, s{S_T1}, v{T[1]}")
    A(f"v_lshl_add_u32 v{T[0]}, v{T[1]}, 5, v{T[0]}"); A(f"v_lshlrev_b32 v{T[0]}, 7, v{T[0]}")
    A(f"v_add_u32 v{VFL}, {WS_FLAG+FO*128}, v{T[0]}")
    A(f"v_and_b32 v{T[2]}, 15, v0"); A(f"v_add_u32 v{T[2]}, s{S_T0}, v{T[2]}")
    A(f"v_mul_u32_u24 v{T[3]}, 896, v{T[2]}")
    A(f"v_lshlrev_b32 v{T[2]}, 2, v{T[2]}")
    A(f"s_lshl_b32 s{S_T1}, s{S_WV}, 15"); A(f"s_add_u32 s{S_T1}, s{S_T1}, {WS_OMG}")
    A(f"v_add_u32 v{T[2]}, s{S_T1}, v{T[2]}")
    PRE = NR - 1
    issued = 0
    for j in range(min(PRE, 14)):
        A.weave([], ld_a2(j)); issued += 1
    OPOLL = opt.opoll
    extra_after = {}
    seq = [("a2", j) for j in range(issued) for _ in range(5)]
    for j in range(18):
        fill = []
        if j == OPOLL:
            spin(A, VFL, VFT, 4); seq = []
            A.stamp(6)
            for blk in range(5):
                A(f"buffer_load_dword v{VOM[blk]}, v{T[2]}, {sr(R_W,4)}, 0 offen offset:{64*blk} sc1"); seq.append(("om", 0))
        last = max([i for i, e in enumerate(seq) if e == ("a2", j)], default=-1)
        if j == 14: last = max([last] + [i for i, e in enumerate(seq) if e[0] == "om"])
        w = f"vmcnt({len(seq)-1-last})" if last >= 0 else ""
        if j >= 9: w += " lgkmcnt(0)"
        if w.strip(): A("s_waitcnt " + w.strip())
        if j == 14:
            A.nop(8)
            for u in range(4):
                for blk in range(5):
                    for i in range(4): A(f"v_mul_f32 v{ACC2(u,blk)+i}, v{VOM[blk]}, v{ACC2(u,blk)+i}")
            A.nop(2)
        if 9 <= j + 1 < 18: fill += rd_b2(j + 1, WB[(j + 1) & 1])
        lim = 18 if j >= OPOLL else 14
        while issued < min(lim, j + NR) :
            fill += ld_a2(issued); seq += [("a2", issued)] * 5; issued += 1
        A.weave(mf2(j), fill, per=1)
    A.stamp(7)
    VRW = 1; VRR = [2, 3, 4]
    A(f"v_lshlrev_b32 v{VRW}, 4, v0")
    for u in range(1, 4):
        A(f"s_xor_b32 s{S_T1}, s{S_WV}, {u}"); A(f"s_mul_i32 s{S_T1}, s{S_T1}, 12288")
        A(f"v_add_u32 v{VRR[u-1]}, s{S_T1}, v{VRW}")
    A(f"v_add_u32 v{VRW}, s{S_MB}, v{VRW}")
    def roff(u, blk):
        i = (u - 1) * 5 + blk
        return i * 1024 if i < 10 else SLOT + (i - 10) * 1024
    A.nop(4)
    for u in range(1, 4):
        for blk in range(5): A(f"ds_write_b128 v{VRW}, {vr(ACC2(u,blk),4)} offset:{roff(u,blk)}")
    A("s_waitcnt lgkmcnt(0)")
    A("s_barrier")
    for blk in range(5):
        for u in range(1, 4): A(f"ds_read_b128 {vr(ACC2(u,blk),4)}, v{VRR[u-1]} offset:{roff(u,blk)}")
    A(f"v_lshrrev_b32 v{T[1]}, 4, v0"); A(f"v_lshl_add_u32 v{T[3]}, v{T[1]}, 3, v{T[3]}")
    A(f"s_lshl_b32 s{S_T0}, s{S_CT}, 7"); A(f"s_lshl_b32 s{S_T1}, s{S_WV}, 5"); A(f"s_add_u32 s{S_T0}, s{S_T0}, s{S_T1}")
    A(f"v_add_u32 v{T[3]}, s{S_T0}, v{T[3]}")
    for blk in range(5):
        A(f"s_waitcnt lgkmcnt({12-3*blk})")
        a0, a1, a2, a3 = (ACC2(u, blk) for u in range(4))
        for i in range(4): A(f"v_add_f32 v{a0+i}, v{a0+i}, v{a1+i}")
        for i in range(4): A(f"v_add_f32 v{a2+i}, v{a2+i}, v{a3+i}")
        for i in range(4): A(f"v_add_f32 v{a0+i}, v{a0+i}, v{a2+i}")
        A(f"v_cvt_pk_bf16_f32 v{a0}, v{a0}, v{a0+1}"); A(f"v_cvt_pk_bf16_f32 v{a0+1}, v{a0+2}, v{a0+3}")
        A(f"s_mov_b32 s{S_T0}, {16*896*blk}")
        A(f"buffer_store_dwordx2 {vr(a0,2)}, v{T[3]}, {sr(R_OUT,4)}, s{S_T0} offen {opt.outpol}")
    if opt.stamps:
        A("s_waitcnt vmcnt(0)"); A.stamp(8); write_stamps(A)
    A("s_endpgm")

ASLOT = 49152; AK, AV = 32768, 40960
LOG2E = 0x3fb8aa3b
def phi(A, r, n, t):
    for i in range(n): A(f"v_mul_f32 v{t+i}, {LOG2E:#x}, v{r+i}")
    for i in range(n): A(f"v_exp_f32_e64 v{t+i}, v{t+i} clamp")
    for i in range(n): A(f"v_max_f32 v{r+i}, 0, v{r+i}")
    for i in range(n): A(f"v_add_f32 v{r+i}, v{r+i}, v{t+i}")
    for i in range(n): A(f"v_add_f32 v{r+i}, 0x358637bd, v{r+i}")

def att(A):
    opt = A.opt
    A.label("L_att")
    A(f"s_sub_u32 s{S_T0}, s{S_T0}, 3")
    A(f"s_lshr_b32 s{S_T2}, s{S_T0}, 2")
    A(f"s_lshl_b32 s{S_RT}, s{S_T1}, 1"); A(f"s_add_u32 s{S_RT}, s{S_RT}, s{S_T2}")
    A(f"s_and_b32 s{S_T0}, s{S_T0}, 3")
    A(f"s_lshl_b32 s{S_HP}, s{S_HALF}, 2"); A(f"s_add_u32 s{S_HP}, s{S_HP}, s{S_T0}")
    A(f"s_mul_i32 s{S_KC}, s{S_T2}, 3"); A(f"s_add_u32 s{S_KC}, s{S_KC}, s{S_T1}")
    A(f"s_lshl_b32 s{S_T0}, s{S_T0}, 1"); A(f"s_add_u32 s{S_KC}, s{S_KC}, s{S_T0}")
    mod7(A, S_KC)
    if opt.norot: A(f"s_mov_b32 s{S_KC}, 0")
    for i in range(7):
        A(f"s_mov_b32 s{S_K7+i}, s{S_KC}")
        if i < 6:
            A(f"s_add_u32 s{S_KC}, s{S_KC}, 1"); A(f"s_cmp_eq_u32 s{S_KC}, 7"); A(f"s_cselect_b32 s{S_KC}, 0, s{S_KC}")
    VX = [1, 2, 3, 4]; VW = [5, 6]
    T = [24, 25, 26, 27, 28, 29]
    A(f"v_lshrrev_b32 v{T[0]}, 3, v0"); A(f"v_lshrrev_b32 v{T[1]}, 4, v0")
    A(f"v_and_b32 v{T[2]}, 7, v0"); A(f"v_xor_b32 v{T[3]}, v{T[2]}, v{T[1]}")
    A(f"s_lshl_b32 s{S_T0}, s{S_RT}, 2"); A(f"s_add_u32 s{S_T0}, s{S_T0}, s{S_WV}"); A(f"s_lshl_b32 s{S_T0}, s{S_T0}, 6")
    A(f"v_add_u32 v{T[4]}, s{S_T0}, v{T[0]}"); A(f"v_mul_u32_u24 v{T[4]}, 896, v{T[4]}")
    A(f"v_lshl_add_u32 v{VX[0]}, v{T[3]}, 4, v{T[4]}")
    A(f"v_xor_b32 v{T[4]}, 64, v{VX[0]}")
    A(f"v_add_u32 v{VX[1]}, {6144}, v{T[4]}"); A(f"v_add_u32 v{VX[2]}, {2*6144}, v{VX[0]}"); A(f"v_add_u32 v{VX[3]}, {3*6144}, v{T[4]}")
    A(f"v_and_b32 v{T[3]}, 1, v{T[1]}"); A(f"v_lshlrev_b32 v{T[3]}, 2, v{T[3]}"); A(f"v_xor_b32 v{T[3]}, v{T[3]}, v{T[2]}")
    A(f"v_cmp_ne_u32 {sr(S_MASK,2)}, 7, v{T[3]}")
    A(f"v_min_u32 v{T[3]}, 6, v{T[3]}")
    A(f"s_lshl_b32 s{S_T0}, s{S_WV}, 4"); A(f"v_add_u32 v{T[4]}, s{S_T0}, v{T[0]}"); A(f"v_mul_u32_u24 v{T[4]}, 2688, v{T[4]}")
    A(f"v_lshl_add_u32 v{VW[0]}, v{T[3]}, 4, v{T[4]}")
    A(f"s_mul_i32 s{S_T0}, s{S_HP}, 112"); A(f"v_add_u32 v{VW[0]}, s{S_T0}, v{VW[0]}")
    A(f"v_add_u32 v{VW[1]}, {8*2688-1024}, v{VW[0]}")
    A(f"s_lshl_b32 s{S_MX}, s{S_WV}, 13"); A(f"s_lshl_b32 s{S_MW}, s{S_WV}, 11")
    A("s_waitcnt lgkmcnt(0)")
    srd(A, R_X, P_X, 2048*896); srd(A, R_A, P_QKV, 448*2688)
    S_SX2 = S_C2; S_SV = 73
    def dma_stage(st):
        sb = (st % 3) * ASLOT; kc = S_K7 + st; f = []
        f.append((f"s_lshl_b32 s{S_SX}, s{kc}, 7", f"s_add_u32 m0, s{S_MX}, {sb}", f"s_add_u32 s{S_SX2}, s{S_SX}, {32*896}"))
        for i in range(4): f.append(f"buffer_load_dwordx4 v{VX[i]}, {sr(R_X,4)}, s{S_SX} offen offset:{1024*i} lds")
        f.append((f"s_add_u32 m0, s{S_MX}, {sb+4096}", f"s_mul_i32 s{S_SW}, s{kc}, {64*2688}"))
        for i in range(4): f.append(f"buffer_load_dwordx4 v{VX[i]}, {sr(R_X,4)}, s{S_SX2} offen offset:{1024*i} lds")
        f.append((f"s_add_u32 m0, s{S_MW}, {sb+AK}", f"s_add_u32 s{S_SV}, s{S_SW}, 1792", f"s_add_u32 s{S_SW}, s{S_SW}, 896"))
        for i in range(2): f.append(f"buffer_load_dwordx4 v{VW[i]}, {sr(R_A,4)}, s{S_SW} offen offset:{1024*i} lds")
        f.append((f"s_add_u32 m0, s{S_MW}, {sb+AV}", "s_nop 0"))
        for i in range(2): f.append(f"buffer_load_dwordx4 v{VW[i]}, {sr(R_A,4)}, s{S_SV} offen offset:{1024*i} lds")
        return f
    def qloc(ch):
        return (1, ch * 8192) if ch < 4 else (2, (ch - 4) * 8192)
    def dma_q(ch):
        sl, off = qloc(ch)
        return [(f"s_mul_i32 s{S_SW}, s{S_K7+ch}, {64*2688}", f"s_add_u32 m0, s{S_MW}, {sl*ASLOT+off}"),
                (f"s_mov_b64 exec, {sr(S_MASK,2)}",
                 f"buffer_load_dwordx4 v{VW[0]}, {sr(R_A,4)}, s{S_SW} offen lds",
                 f"buffer_load_dwordx4 v{VW[1]}, {sr(R_A,4)}, s{S_SW} offen offset:1024 lds",
                 "s_mov_b64 exec, -1")]
    VG = [30, 20]
    A(f"s_add_u32 s{S_T0}, s{S_K7}, s{S_WV}"); A(f"s_add_u32 s{S_T1}, s{S_T0}, 4")
    mod7(A, S_T0); mod7(A, S_T1)
    A(f"s_lshl_b32 s{S_T0}, s{S_T0}, 7"); A(f"s_lshl_b32 s{S_T1}, s{S_T1}, 7")
    A(f"v_lshlrev_b32 v{T[5]}, 1, v0")
    A(f"v_add_u32 v{T[4]}, s{S_T0}, v{T[5]}"); A(f"v_add_u32 v{T[5]}, s{S_T1}, v{T[5]}")
    A(f"global_load_ushort v{VG[0]}, v{T[4]}, {sr(P_GW,2)}")
    A(f"global_load_ushort v{VG[1]}, v{T[5]}, {sr(P_GW,2)}")
    for st in range(3): A.weave([], dma_stage(st))
    A.stamp(1)
    A(f"v_mov_b32 v{VG[0]+1}, 0"); A(f"v_mov_b32 v{VG[1]+1}, 0")
    srd(A, R_W, P_WS, WS_SIZE)
    VXR = [7, 8, 9, 10]
    VXR2 = [11, 12, 13, 14]
    VWR = [[15, 16], [17, 18]]
    A(f"v_and_b32 v{T[2]}, 31, v0"); A(f"v_lshrrev_b32 v{T[3]}, 5, v0")
    A(f"v_bfe_u32 v{T[4]}, v0, 1, 3"); A(f"v_xor_b32 v{T[4]}, v{T[4]}, v{T[3]}"); A(f"v_lshlrev_b32 v{T[4]}, 4, v{T[4]}")
    A(f"v_lshl_add_u32 v{T[4]}, v{T[2]}, 7, v{T[4]}")
    for s in range(4):
        A(f"v_xor_b32 v{VXR[s]}, {32*s}, v{T[4]}"); A(f"v_add_u32 v{VXR[s]}, s{S_MX}, v{VXR[s]}")
        A(f"v_add_u32 v{VXR2[s]}, {2*ASLOT}, v{VXR[s]}")
    A(f"v_bfe_u32 v{T[2]}, v0, 2, 2")
    A(f"v_lshl_add_u32 v{T[4]}, v{T[3]}, 3, v{T[2]}"); A(f"v_lshlrev_b32 v{T[4]}, 7, v{T[4]}")
    A(f"v_and_b32 v{T[2]}, 2, v{T[2]}"); A(f"v_lshlrev_b32 v{T[2]}, 5, v{T[2]}")
    A(f"v_bfe_u32 v{T[5]}, v0, 4, 1"); A(f"v_lshlrev_b32 v{T[5]}, 2, v{T[5]}")
    A(f"v_and_b32 v{T[0]}, 3, v0"); A(f"v_add_u32 v{T[5]}, v{T[5]}, v{T[0]}"); A(f"v_lshlrev_b32 v{T[5]}, 3, v{T[5]}")
    WB0, WB1 = 32768, 32768 + 65536
    for hh in range(2):
        A(f"v_add_u32 v{T[0]}, {56*hh}, v{T[5]}"); A(f"v_xor_b32 v{T[0]}, v{T[0]}, v{T[2]}"); A(f"v_add_u32 v{T[0]}, v{T[0]}, v{T[4]}")
        A(f"v_add_u32 v{VWR[0][hh]}, {WB0}, v{T[0]}"); A(f"v_add_u32 v{VWR[1][hh]}, {WB1}, v{T[0]}")
    def wtr(dst, hh, addr):
        st = 0 if addr < WB1 else 1
        off = addr - (WB0, WB1)[st]
        assert 0 <= off < 65536
        return f"ds_read_b64_tr_b16 {ar(dst,2)}, v{VWR[st][hh]} offset:{off}"
    VGA = 19; VGO = 22; VZ = 23
    A(f"v_and_b32 v{T[0]}, 2, v0"); A(f"v_lshlrev_b32 v{T[0]}, 5, v{T[0]}"); A(f"v_xor_b32 v{T[0]}, 112, v{T[0]}")
    A(f"v_lshl_add_u32 v{T[0]}, v0, 7, v{T[0]}"); A(f"v_add_u32 v{T[0]}, s{S_MX}, v{T[0]}"); A(f"v_add_u32 v{VGA}, {ASLOT}, v{T[0]}")
    A(f"v_mov_b32 v{VZ}, 0")
    XR = lambda ks, b: (ks * 2 + b) * 4
    FR = [224, 240]
    AK_ = lambda b, hh: 64 + (b * 2 + hh) * 16
    AV_ = lambda b, hh: 128 + (b * 2 + hh) * 16
    AQ_ = lambda b, hh: 192 + (b * 2 + hh) * 16
    def reads1(st, s, buf):
        sl = st % 3; ks = st * 4 + s; o = FR[buf]
        xv = VXR2[s] if sl == 2 else VXR[s]; xo = 0 if sl == 2 else sl * ASLOT
        x = [f"ds_read_b128 {ar(XR(ks,b),4)}, v{xv} offset:{xo+b*4096}" for b in range(2)]
        w = [wtr(o + (mat * 2 + hh) * 4 + 2 * rd, hh, sl * ASLOT + (AK, AV)[mat] + s * 2048 + rd * 512) for mat in range(2) for hh in range(2) for rd in range(2)]
        return [x[0]] + w[:2] + [x[1]] + w[2:]
    def mf1(ks, buf):
        o = FR[buf]; r = []
        for mat in range(2):
            for hh in range(2):
                for b in range(2):
                    d = vr((AK_, AV_)[mat](b, hh), 16)
                    r.append(f"v_mfma_f32_32x32x16_bf16 {d}, {ar(XR(ks,b),4)}, {ar(o+(mat*2+hh)*4,4)}, {'0' if ks == 0 else d}")
        return r
    def reads2(ks, buf):
        sl, off = qloc(ks // 4); s = ks % 4; o = FR[buf]
        return [wtr(o + hh * 4 + 2 * rd, hh, sl * ASLOT + off + s * 2048 + rd * 512) for hh in range(2) for rd in range(2)]
    def mf2(ks, buf):
        o = FR[buf]; r = []
        for hh in range(2):
            for b in range(2):
                d = vr(AQ_(b, hh), 16)
                r.append(f"v_mfma_f32_32x32x16_bf16 {d}, {ar(o+hh*4,4)}, {ar(XR(ks,b),4)}, {'0' if ks == 0 else d}")
        return r
    A("s_waitcnt vmcnt(24)")
    A("s_barrier")
    A.stamp(2)
    A.many(reads1(0, 0, 0))
    pend = []; ks = 0
    for st in range(7):
        for s in range(4):
            buf = ks & 1
            if s == 3:
                n = {0: 12, 1: 12, 2: 12, 3: 12, 4: 13, 5: 8, 6: None}[st]
                A(f"s_waitcnt vmcnt({n}) lgkmcnt(0)" if n is not None else "s_waitcnt lgkmcnt(0)")
                A("s_barrier")
                assert not pend
                if st + 3 < 7:
                    pend = dma_stage(st + 3)
                    if st == 3: pend.append(f"global_load_dword v{VGO}, v{VZ}, {sr(P_DBG,2)} sc1")
                elif st == 4:
                    pend = [f"ds_write_b64 v{VGA}, {vr(VG[0],2)}"] + sum((dma_q(c) for c in range(4)), [])
                elif st == 5:
                    pend = [f"ds_write_b64 v{VGA}, {vr(VG[1],2)} offset:{ASLOT}"] + sum((dma_q(c) for c in range(4, 7)), [])
            else:
                A("s_waitcnt lgkmcnt(0)")
            nxt = reads1(st, s + 1, buf ^ 1) if s < 3 else (reads1(st + 1, 0, buf ^ 1) if st < 6 else [])
            mf = mf1(ks, buf)
            left = {3: 4, 0: 3, 1: 2, 2: 1}[s]
            nd = -(-len(pend) // left)
            dm, pend = pend[:nd], pend[nd:]
            A.weave(mf[:4], nxt, per=3)
            A.weave(mf[4:], dm, per=1)
            ks += 1
    A.stamp(3)
    A(f"v_and_b32 v{T[0]}, 31, v0")
    A(f"v_cmp_eq_u32 {sr(S_MASK,2)}, 28, v{T[0]}")
    A(f"v_cmp_gt_u32 vcc, 28, v{T[0]}")
    A(f"v_mov_b32 v{T[1]}, 0x3f803f80")
    A.nop(8)
    for b in range(2):
        for hh in range(2):
            r = AK_(b, hh); phi(A, r, 16, 32)
            for i in range(8): A(f"v_cvt_pk_bf16_f32 v{r+i}, v{r+2*i}, v{r+2*i+1}")
            for i in range(8): A(f"v_cndmask_b32 v{r+i}, 0, v{r+i}, vcc")
            r = AV_(b, hh)
            for i in range(8): A(f"v_cvt_pk_bf16_f32 v{r+i}, v{r+2*i}, v{r+2*i+1}")
            for i in range(8): A(f"v_cndmask_b32 v{r+i}, v{r+i}, v{T[1]}, {sr(S_MASK,2)}")
    A.nop(2)
    KV = [32, 48]
    for b in range(2):
        for s in range(2):
            for hh in range(2):
                d = vr(KV[hh], 16)
                A(f"v_mfma_f32_32x32x16_bf16 {d}, {vr(AK_(b,hh)+4*s,4)}, {vr(AV_(b,hh)+4*s,4)}, {'0' if (b, s) == (0, 0) else d}")
    A(f"v_lshlrev_b32 v{T[2]}, 4, v0")
    A(f"v_add_u32 v{T[0]}, s{S_MX}, v{T[2]}")
    A(f"v_add_u32 v{T[1]}, s{S_MW}, v{T[2]}")
    A.nop(12)
    for i in range(8): A(f"ds_write_b128 v{T[0]}, {vr(32+4*i,4)} offset:{1024*i}")
    A("s_waitcnt vmcnt(0) lgkmcnt(0)")
    A("s_barrier")
    for w in range(4):
        for i in range(2): A(f"ds_read_b128 {vr(32+8*w+4*i,4)}, v{T[1]} offset:{8192*w+1024*i}")
    A.many(reads2(0, 0))
    A(f"s_lshl_b32 s{S_T0}, s{S_HP}, 3"); A(f"s_add_u32 s{S_T0}, s{S_T0}, s{S_RT}"); A(f"s_lshl_b32 s{S_T0}, s{S_T0}, 2"); A(f"s_add_u32 s{S_T0}, s{S_T0}, s{S_WV}")
    A(f"s_lshl_b32 s{S_T1}, s{S_T0}, 11"); A(f"s_add_u32 s{S_T1}, s{S_T1}, {WS_KVP}")
    A("s_waitcnt lgkmcnt(4)")
    for i in range(8): A(f"v_add_f32 v{32+i}, v{32+i}, v{40+i}")
    for i in range(8): A(f"v_add_f32 v{48+i}, v{48+i}, v{56+i}")
    for i in range(8): A(f"v_add_f32 v{32+i}, v{32+i}, v{48+i}")
    for i in range(2): A(f"buffer_store_dwordx4 {vr(32+4*i,4)}, v{T[2]}, {sr(R_W,4)}, s{S_T1} offen offset:{1024*i} sc1")
    go_check(A, VGO, VZ)
    A(f"s_add_u32 s{S_T0}, s{S_T0}, {FKV}")
    FLAG_AT = 3; POLL_AT = opt.kvpoll
    VFL, VFT = 20, 21
    for ks in range(28):
        buf = ks & 1
        A("s_waitcnt lgkmcnt(0)")
        if ks == FLAG_AT:
            A("s_waitcnt vmcnt(0)")
            A.stamp(4)
            set_flag(A, S_T0, VFL, VFT)
        if ks == POLL_AT:
            A(f"s_lshl_b32 s{S_T0}, s{S_HP}, 5"); A(f"s_add_u32 s{S_T0}, s{S_T0}, s{S_WV}")
            A(f"s_lshl_b32 s{S_T1}, s{S_T0}, 7"); A(f"s_add_u32 s{S_T1}, s{S_T1}, {WS_FLAG+FKV*128}")
            A(f"v_lshlrev_b32 v{VFL}, 9, v0"); A(f"v_add_u32 v{VFL}, s{S_T1}, v{VFL}")
            spin(A, VFL, VFT, 8)
            A.stamp(5)
            A(f"s_lshl_b32 s{S_T1}, s{S_T0}, 11"); A(f"s_add_u32 s{S_T1}, s{S_T1}, {WS_KVP}")
            for p in range(8):
                for i in range(2): A(f"buffer_load_dwordx4 {vr(64+8*p+4*i,4)}, v{T[2]}, {sr(R_W,4)}, s{S_T1} offen offset:{1024*i} sc1")
                if p < 7: A(f"s_add_u32 s{S_T1}, s{S_T1}, 8192")
        A.weave(mf2(ks, buf), reads2(ks + 1, buf ^ 1) if ks < 27 else [], per=2)
    SP = 3 * ASLOT
    A("s_waitcnt vmcnt(0)")
    for stp in (32, 16, 8):
        for i in range(stp): A(f"v_add_f32 v{64+i}, v{64+i}, v{64+stp+i}")
    for i in range(4): A(f"v_cvt_pk_bf16_f32 v{64+i}, v{64+2*i}, v{64+2*i+1}")
    A(f"v_add_u32 v{T[0]}, {SP}, v{T[2]}")
    A(f"s_lshl_b32 s{S_T0}, s{S_WV}, 10"); A(f"v_add_u32 v{T[1]}, s{S_T0}, v{T[0]}")
    A(f"ds_write_b128 v{T[1]}, {vr(64,4)}")
    A("s_waitcnt lgkmcnt(0)")
    A("s_barrier")
    for i in range(4): A(f"ds_read_b128 {vr(64+4*i,4)}, v{T[0]} offset:{1024*i}")
    A.stamp(6)
    VGT = [80, 82]
    A(f"v_cmp_gt_u32 vcc, 32, v0")
    for b in range(2):
        A(f"v_mov_b32 v{VGT[b]}, v{AQ_(b,1)+12}"); A(f"v_mov_b32 v{VGT[b]+1}, v{AQ_(b,1)+12}")
    A.nop(2)
    for b in range(2): A(f"v_permlane32_swap_b32 v{VGT[b]}, v{VGT[b]+1}")
    A.nop(2)
    for b in range(2): A(f"v_mul_f32 v{VGT[b]}, {0xbfb8aa3b:#x}, v{VGT[b]+1}")
    for b in range(2): A(f"v_exp_f32 v{VGT[b]}, v{VGT[b]}")
    A.nop(1)
    for b in range(2): A(f"v_add_f32 v{VGT[b]}, 1.0, v{VGT[b]}")
    for b in range(2): A(f"v_rcp_f32 v{VGT[b]+1}, v{VGT[b]}")
    A.nop(1)
    for b in range(2): A(f"v_sub_f32 v{VGT[b]}, 1.0, v{VGT[b]+1}")
    A(f"v_cndmask_b32 v84, v{VGT[1]}, v{VGT[0]}, vcc")
    A(f"s_lshl_b32 s{S_T0}, s{S_RT}, 2"); A(f"s_add_u32 s{S_T0}, s{S_T0}, s{S_WV}")
    A(f"s_lshl_b32 s{S_T1}, s{S_T0}, 8"); A(f"s_lshl_b32 s{S_T2}, s{S_HP}, 14"); A(f"s_add_u32 s{S_T1}, s{S_T1}, s{S_T2}"); A(f"s_add_u32 s{S_T1}, s{S_T1}, {WS_OMG}")
    A(f"v_lshlrev_b32 v85, 2, v0")
    A(f"buffer_store_dword v84, v85, {sr(R_W,4)}, s{S_T1} offen sc1")
    for b in range(2):
        for hh in range(2):
            r = AQ_(b, hh); phi(A, r, 16, 32)
            for i in range(8): A(f"v_cvt_pk_bf16_f32 v{r+i}, v{r+2*i}, v{r+2*i+1}")
            for i in (6, 7): A(f"v_cndmask_b32 v{r+i}, 0, v{r+i}, vcc")
    A("s_waitcnt lgkmcnt(0)")
    A.nop(2)
    AO = AV_
    for s in range(2):
        for b in range(2):
            for hh in range(2):
                d = vr(AO(b, hh), 16)
                A(f"v_mfma_f32_32x32x16_bf16 {d}, {vr(64+(hh*2+s)*4,4)}, {vr(AQ_(b,hh)+4*s,4)}, {'0' if s == 0 else d}")
    A(f"v_bfe_u32 v{T[0]}, v0, 4, 1"); A(f"v_mul_u32_u24 v{T[0]}, {TB}, v{T[0]}")
    A(f"v_and_b32 v{T[1]}, 15, v0"); A(f"v_lshrrev_b32 v{T[3]}, 5, v0"); A(f"v_lshl_add_u32 v{T[1]}, v{T[3]}, 4, v{T[1]}")
    A(f"v_lshl_add_u32 v{T[0]}, v{T[1]}, 4, v{T[0]}")
    A(f"s_mul_i32 s{S_T1}, s{S_T0}, 288"); A(f"s_lshl_b32 s{S_T2}, s{S_HP}, 1"); A(f"s_add_u32 s{S_T1}, s{S_T1}, s{S_T2}")
    A(f"s_add_u32 s{S_T1}, s{S_T1}, 56"); A(f"s_lshl_b32 s{S_T1}, s{S_T1}, 10")
    A(f"s_add_u32 s{S_T2}, s{S_T1}, {2*TB}")
    A.nop(12)
    tl = [(b, hh) for b in range(2) for hh in range(2)]
    for n, (b, hh) in enumerate(tl):
        A(f"v_mov_b32 v{88+2*n}, v{AO(b,hh)+12}"); A(f"v_mov_b32 v{89+2*n}, v{AO(b,hh)+12}")
    A.nop(2)
    for n in range(4): A(f"v_permlane32_swap_b32 v{88+2*n}, v{89+2*n}")
    A.nop(2)
    for n in range(4): A(f"v_add_f32 v{89+2*n}, 0x358637bd, v{89+2*n}")
    for n in range(4): A(f"v_rcp_f32 v{89+2*n}, v{89+2*n}")
    A.nop(1)
    for n, (b, hh) in enumerate(tl): A(f"v_mul_f32 v{89+2*n}, v{89+2*n}, v{VGT[b]+1}")
    for n, (b, hh) in enumerate(tl):
        r = AO(b, hh)
        for i in range(16): A(f"v_mul_f32 v{r+i}, v{89+2*n}, v{r+i}")
        for i in range(8): A(f"v_cvt_pk_bf16_f32 v{r+i}, v{r+2*i}, v{r+2*i+1}")
        for i in (6, 7): A(f"v_cndmask_b32 v{r+i}, 0, v{r+i}, vcc")
        for jj in range(2):
            A(f"buffer_store_dwordx4 {vr(r+4*jj,4)}, v{T[0]}, {sr(R_W,4)}, s{(S_T1,S_T2)[b]} offen offset:{1024*hh+512*jj} sc1")
    A.stamp(7)
    A(f"s_lshl_b32 s{S_T1}, s{S_HP}, 5"); A(f"s_add_u32 s{S_T0}, s{S_T0}, s{S_T1}"); A(f"s_add_u32 s{S_T0}, s{S_T0}, {FO}")
    A("s_waitcnt vmcnt(0)")
    set_flag(A, S_T0, VFL, VFT)
    if opt.stamps:
        A.stamp(8); write_stamps(A)
    A("s_endpgm")

def init(A):
    A.label("L_init")
    A(f"s_cmp_lg_u32 s{S_CT}, 7"); A("s_cbranch_scc1 L_exit")
    A(f"s_cmp_lg_u32 s{S_HALF}, 0"); A("s_cbranch_scc1 L_exit")
    A(f"s_lshl_b32 s{S_T0}, s{S_WV}, 6")
    A(f"v_add_u32 v1, s{S_T0}, v0"); A("v_lshlrev_b32 v1, 7, v1"); A("v_mov_b32 v2, 0"); A("v_mov_b32 v3, 1")
    A("s_waitcnt lgkmcnt(0)")
    srd(A, R_W, P_WS, WS_SIZE)
    for i in range(5):
        A(f"s_mov_b32 s{S_T0}, {WS_FLAG + i*256*128}")
        A(f"buffer_store_dword v2, v1, {sr(R_W,4)}, s{S_T0} offen sc1")
    A("s_waitcnt vmcnt(0)")
    A("s_barrier")
    A(f"s_cmp_lg_u32 s{S_WV}, 0"); A("s_cbranch_scc1 L_exit")
    A("s_mov_b64 exec, 1")
    A(f"global_store_dword v2, v3, {sr(P_DBG,2)} sc1")
    if A.opt.stamps:
        A("s_mov_b64 exec, -1"); A("s_waitcnt vmcnt(0)"); A.stamp(8); write_stamps(A)
    A.label("L_exit")
    A("s_endpgm")

def generate(**kw):
    d = dict(stamps=False, norot=False, opoll=9, kvpoll=20, outpol="")
    d.update(kw)
    opt = Opt(**d)
    A = Asm(opt)
    prologue(A); ffn(A); att(A); init(A)
    ref = open(os.path.join(os.path.dirname(os.path.abspath(__file__)), "header.txt")).read()
    head = ref + "; @launch grid=(256,1,1) block=(256,1,1) lds=163840\n"
    head += f'.amdgcn_target "amdgcn-amd-amdhsa--gfx950"\n.text\n.globl {NAME}_kernel\n.p2align 8\n.type {NAME}_kernel,@function\n{NAME}_kernel:\n'
    tail = f"""
.section .rodata,"a"
.p2align 6
.amdhsa_kernel {NAME}_kernel
  .amdhsa_next_free_vgpr 512
  .amdhsa_next_free_sgpr 102
  .amdhsa_accum_offset 256
  .amdhsa_group_segment_fixed_size 0
  .amdhsa_kernarg_size 88
  .amdhsa_user_sgpr_count 2
  .amdhsa_user_sgpr_kernarg_segment_ptr 1
  .amdhsa_system_sgpr_workgroup_id_x 1
.end_amdhsa_kernel
"""
    return head + "\n".join(A.l) + tail

if __name__ == "__main__":
    out = sys.argv[1]
    kw = {}
    for a in sys.argv[2:]:
        k, v = a.split("=")
        kw[k] = int(v) if v.lstrip("-").isdigit() else v
    open(out, "w").write(generate(**kw))
```

```python
import sys, os
NAME = "gated_mix__linear_attn_block__glu_gated_reglu__prompt"
MB = 1 << 20
WS_A2 = 0
WS_KVP = 10 * MB
WS_OMG = 11 * MB
WS_FLAG = 12 * MB
WS_STAMP = 14 * MB
WS_SIZE = 16 * MB
FH, FKV, FO, NFLAG = 0, 728, 984, 1240
SPIN_MAX = 400000
TB = 72 * 1024

class Opt:
    stamps = False
    def __init__(self, **kw):
        self.__dict__.update(kw)

class Asm:
    def __init__(self, opt):
        self.l = []; self.opt = opt; self.nlab = 0
    def __call__(self, s):
        self.l.append("    " + s)
    def label(self, s): self.l.append(s + ":")
    def newlab(self, p):
        self.nlab += 1
        return f"L_{p}_{self.nlab}"
    def many(self, lst):
        for s in lst: self(s)
    def nop(self, n):
        while n > 0:
            k = min(n, 16); self(f"s_nop {k-1}"); n -= k
    def stamp(self, i):
        if self.opt.stamps:
            self(f"s_memrealtime s[{S_ST+2*i}:{S_ST+2*i+1}]")
    def weave(self, mf, fill, per=2, start=0):
        fill = list(fill); p = 0
        for i, m in enumerate(mf):
            self(m)
            if i >= start:
                n = 0
                while p < len(fill) and n < per:
                    f = fill[p]; p += 1
                    if isinstance(f, (tuple, list)):
                        self.many(f); n += len(f)
                    else:
                        self(f); n += 1
        while p < len(fill):
            f = fill[p]; p += 1
            if isinstance(f, (tuple, list)): self.many(f)
            else: self(f)

def vr(b, n): return f"v[{b}:{b+n-1}]"
def ar(b, n): return f"a[{b}:{b+n-1}]"
def sr(b, n): return f"s[{b}:{b+n-1}]"

P_X, P_QKV, P_WO, P_BX, P_WG, P_WU, P_WD, P_GW = 4, 6, 8, 10, 12, 14, 16, 18
P_OUT, P_DBG, P_WS = 20, 22, 24
R_X, R_A, R_B, R_D, R_O, R_W, R_OUT = 28, 32, 36, 40, 44, 48, 52
S_WV, S_R, S_CT, S_HALF, S_C, S_KC, S_SX, S_SW = 56, 57, 58, 59, 60, 61, 62, 63
S_T0, S_T1, S_T2, S_T3 = 64, 65, 66, 67
S_MX, S_MW, S_MB, S_CNT = 68, 69, 70, 71
S_C2, S_MASK = 72, 74
S_K7 = 76
S_RT, S_HP = 57, 58
S_ST = 84

def srd(A, r, p, size):
    A(f"s_mov_b32 s{r}, s{p}"); A(f"s_mov_b32 s{r+1}, s{p+1}")
    A(f"s_mov_b32 s{r+2}, {size}"); A(f"s_mov_b32 s{r+3}, 0x20000")

def mod7(A, s):
    A(f"s_mul_i32 s{S_T3}, s{s}, 37"); A(f"s_lshr_b32 s{S_T3}, s{S_T3}, 8")
    A(f"s_mul_i32 s{S_T3}, s{S_T3}, 7"); A(f"s_sub_u32 s{s}, s{s}, s{S_T3}")

def spin(A, vaddr, vtmp, nl, srdw=R_W, first_loaded=False):
    L = A.newlab("spin"); D = A.newlab("spun")
    A(f"s_mov_b64 exec, {hex((1 << nl) - 1)}")
    A(f"s_mov_b32 s{S_CNT}, 0")
    A.label(L)
    A(f"buffer_load_dword v{vtmp}, v{vaddr}, {sr(srdw,4)}, 0 offen sc1")
    A(f"s_add_u32 s{S_CNT}, s{S_CNT}, 1")
    A(f"s_cmp_gt_u32 s{S_CNT}, {SPIN_MAX}")
    A("s_waitcnt vmcnt(0)")
    A(f"s_cbranch_scc1 {D}")
    A(f"v_cmp_ne_u32 vcc, 1, v{vtmp}")
    A(f"s_cbranch_vccnz {L}")
    A.label(D)
    A("s_mov_b64 exec, -1")

def go_check(A, vgo, vz):
    L = A.newlab("go"); D = A.newlab("gone")
    A(f"s_mov_b32 s{S_CNT}, 0")
    A.label(L)
    A(f"v_cmp_ne_u32 vcc, 1, v{vgo}")
    A(f"s_cbranch_vccz {D}")
    A(f"global_load_dword v{vgo}, v{vz}, {sr(P_DBG,2)} sc1")
    A(f"s_add_u32 s{S_CNT}, s{S_CNT}, 1")
    A(f"s_cmp_gt_u32 s{S_CNT}, {SPIN_MAX}")
    A("s_waitcnt vmcnt(0)")
    A(f"s_cbranch_scc0 {L}")
    A.label(D)

def set_flag(A, sidx, va, vb):
    A(f"s_lshl_b32 s{S_T3}, s{sidx}, 7")
    A(f"s_add_u32 s{S_T3}, s{S_T3}, {WS_FLAG}")
    A(f"v_mov_b32 v{va}, 0"); A(f"v_mov_b32 v{vb}, 1")
    A("s_mov_b64 exec, 1")
    A(f"buffer_store_dword v{vb}, v{va}, {sr(R_W,4)}, s{S_T3} offen sc1")
    A("s_mov_b64 exec, -1")

def diag_pad(A, role):
    o = A.opt
    if o.pad is None or o.padrole != role: return
    L = A.newlab("pad")
    A("s_waitcnt lgkmcnt(0)")
    A(f"s_sub_u32 s{S_T0}, s{S_ST+2*o.pad}, s{S_ST}")
    A(f"s_mul_i32 s{S_T0}, s{S_T0}, 10"); A(f"s_add_u32 s{S_T0}, s{S_T0}, 5000")
    A(f"s_min_u32 s{S_T0}, s{S_T0}, 100000")
    A.label(L)
    A("s_sleep 4")
    A(f"s_memrealtime s[{S_MASK}:{S_MASK+1}]"); A("s_waitcnt lgkmcnt(0)")
    A(f"s_sub_u32 s{S_T1}, s{S_MASK}, s{S_ST}")
    A(f"s_cmp_lt_u32 s{S_T1}, s{S_T0}"); A(f"s_cbranch_scc1 {L}")

def write_stamps(A):
    if not A.opt.stamps: return
    A("s_waitcnt lgkmcnt(0)")
    A(f"s_lshl_b32 s{S_T0}, s2, 2"); A(f"s_add_u32 s{S_T0}, s{S_T0}, s{S_WV}"); A(f"s_lshl_b32 s{S_T0}, s{S_T0}, 6")
    A(f"s_add_u32 s{S_T0}, s{S_T0}, {WS_STAMP}")
    A("v_mov_b32 v1, 0")
    for i in range(12):
        A(f"v_mov_b32 v{4+i}, s{S_ST+2*i}" if i < 9 else f"v_mov_b32 v{4+i}, 0")
    A("s_mov_b64 exec, 1")
    for i in range(3):
        A(f"buffer_store_dwordx4 {vr(4+4*i,4)}, v1, {sr(R_W,4)}, s{S_T0} offen offset:{16*i}")
    A("s_mov_b64 exec, -1")

def prologue(A):
    A.stamp(0)
    A("s_cmp_ge_u32 s2, 256"); A("s_cbranch_scc1 L_exit")
    A(f"s_load_dwordx16 {sr(4,16)}, s[0:1], 0")
    A(f"s_load_dwordx4 {sr(20,4)}, s[0:1], 64")
    A(f"s_load_dwordx2 {sr(24,2)}, s[0:1], 80")
    if A.opt.stamps:
        for i in range(1, 9): A(f"s_mov_b64 s[{S_ST+2*i}:{S_ST+2*i+1}], 0")
    A("v_lshrrev_b32 v1, 6, v0")
    A("v_and_b32 v0, 63, v0")
    A(f"v_readfirstlane_b32 s{S_WV}, v1")
    A(f"s_lshr_b32 s{S_T0}, s2, 3")
    A(f"s_bfe_u32 s{S_T1}, s2, 0x20001")
    A(f"s_and_b32 s{S_HALF}, s2, 1")
    A(f"s_cmp_ge_u32 s{S_T0}, 11"); A("s_cbranch_scc1 L_dec_ffn")
    A(f"s_cmp_ge_u32 s{S_T0}, 3"); A("s_cbranch_scc1 L_att")
    A(f"s_mul_i32 s{S_CT}, s{S_T1}, 3"); A(f"s_add_u32 s{S_CT}, s{S_CT}, s{S_T0}")
    A(f"s_cmp_ge_u32 s{S_CT}, 7"); A("s_cbranch_scc1 L_init")
    A(f"s_mov_b32 s{S_R}, 12")
    A(f"s_add_u32 s{S_KC}, s{S_CT}, 4")
    A(f"s_mov_b32 s{S_C2}, 7")
    A("s_branch L_ffn")
    A.label("L_dec_ffn")
    A(f"s_sub_u32 s{S_T0}, s{S_T0}, 11")
    A(f"s_mul_i32 s{S_T2}, s{S_T0}, 37"); A(f"s_lshr_b32 s{S_T2}, s{S_T2}, 8")
    A(f"s_mul_i32 s{S_T3}, s{S_T2}, 7"); A(f"s_sub_u32 s{S_CT}, s{S_T0}, s{S_T3}")
    A(f"s_mul_i32 s{S_R}, s{S_T1}, 3"); A(f"s_add_u32 s{S_R}, s{S_R}, s{S_T2}")
    A(f"s_mul_i32 s{S_C2}, s{S_T2}, 5")
    A(f"s_lshr_b32 s{S_KC}, s{S_C2}, 1")
    A(f"s_add_u32 s{S_KC}, s{S_KC}, s{S_CT}"); A(f"s_add_u32 s{S_KC}, s{S_KC}, s{S_T1}")
    A(f"s_add_u32 s{S_C2}, s{S_C2}, s{S_T1}")

SLOT = 53248; XO, GO_, UO = 0, 20480, 36864
def ffn(A):
    opt = A.opt
    A.label("L_ffn")
    mod7(A, S_KC)
    if opt.norot: A(f"s_mov_b32 s{S_KC}, 0")
    A(f"s_mul_i32 s{S_C}, s{S_HALF}, 7"); A(f"s_add_u32 s{S_C}, s{S_C}, s{S_CT}")
    VX = [1, 2, 3, 4, 5]; VW = [6, 7, 8, 9]
    T = [40, 41, 42, 43, 44, 45]
    A(f"v_lshrrev_b32 v{T[0]}, 3, v0")
    A(f"v_lshrrev_b32 v{T[1]}, 4, v0")
    A(f"v_and_b32 v{T[2]}, 7, v0")
    A(f"v_xor_b32 v{T[2]}, v{T[2]}, v{T[1]}")
    A(f"s_and_b32 s{S_T0}, s{S_WV}, 1"); A(f"s_lshl_b32 s{S_T0}, s{S_T0}, 2")
    A(f"v_xor_b32 v{T[2]}, s{S_T0}, v{T[2]}")
    A(f"s_mul_i32 s{S_T0}, s{S_R}, 160"); A(f"s_mul_i32 s{S_T1}, s{S_WV}, 40"); A(f"s_add_u32 s{S_T0}, s{S_T0}, s{S_T1}")
    A(f"v_add_u32 v{T[3]}, s{S_T0}, v{T[0]}")
    A(f"v_mul_u32_u24 v{T[3]}, 896, v{T[3]}")
    A(f"v_lshl_add_u32 v{VX[0]}, v{T[2]}, 4, v{T[3]}")
    A(f"v_xor_b32 v{T[4]}, 64, v{VX[0]}")
    A(f"v_add_u32 v{VX[1]}, {7168-1024}, v{T[4]}")
    A(f"v_add_u32 v{VX[2]}, {2*(7168-1024)}, v{VX[0]}")
    A(f"v_add_u32 v{VX[3]}, {3*(7168-1024)}, v{T[4]}")
    A(f"v_add_u32 v{VX[4]}, {4*7168}, v{VX[0]}")
    A(f"v_and_b32 v{T[2]}, 15, v0")
    A(f"v_lshlrev_b32 v{T[4]}, 2, v{T[1]}")
    A(f"v_xor_b32 v{T[2]}, v{T[2]}, v{T[4]}")
    A(f"s_lshl_b32 s{S_T0}, s{S_WV}, 4")
    A(f"v_add_u32 v{T[3]}, s{S_T0}, v{T[1]}")
    A(f"v_mul_u32_u24 v{T[3]}, 3584, v{T[3]}")
    A(f"v_lshl_add_u32 v{VW[0]}, v{T[2]}, 4, v{T[3]}")
    A(f"s_lshl_b32 s{S_T0}, s{S_C}, 8")
    A(f"v_add_u32 v{VW[0]}, s{S_T0}, v{VW[0]}")
    for i in range(1, 4): A(f"v_add_u32 v{VW[i]}, {i*(4*3584-1024)}, v{VW[0]}")
    A(f"s_mul_i32 s{S_MX}, s{S_WV}, 5120")
    A(f"s_lshl_b32 s{S_MW}, s{S_WV}, 12")
    A("s_waitcnt lgkmcnt(0)")
    srd(A, R_X, P_X, 2048*896); srd(A, R_A, P_WG, 448*3584); srd(A, R_B, P_WU, 448*3584)
    def dma_stage(st):
        sb = (st % 3) * SLOT
        f = []
        f.append((f"s_lshl_b32 s{S_SX}, s{S_KC}, 7", f"s_add_u32 m0, s{S_MX}, {sb+XO}"))
        f.append((f"s_mul_i32 s{S_SW}, s{S_KC}, {64*3584}", f"buffer_load_dwordx4 v{VX[0]}, {sr(R_X,4)}, s{S_SX} offen lds"))
        for i in range(1, 4): f.append(f"buffer_load_dwordx4 v{VX[i]}, {sr(R_X,4)}, s{S_SX} offen offset:{1024*i} lds")
        f.append((f"s_add_u32 m0, s{S_MX}, {sb+XO+4096}", f"s_add_u32 s{S_KC}, s{S_KC}, 1", f"buffer_load_dwordx4 v{VX[4]}, {sr(R_X,4)}, s{S_SX} offen lds"))
        f.append((f"s_add_u32 m0, s{S_MW}, {sb+GO_}", f"s_cmp_eq_u32 s{S_KC}, 7", f"s_cselect_b32 s{S_KC}, 0, s{S_KC}"))
        for i in range(4): f.append(f"buffer_load_dwordx4 v{VW[i]}, {sr(R_A,4)}, s{S_SW} offen offset:{1024*i} lds")
        f.append((f"s_add_u32 m0, s{S_MW}, {sb+UO}", "s_nop 0", f"buffer_load_dwordx4 v{VW[0]}, {sr(R_B,4)}, s{S_SW} offen lds"))
        for i in range(1, 4): f.append(f"buffer_load_dwordx4 v{VW[i]}, {sr(R_B,4)}, s{S_SW} offen offset:{1024*i} lds")
        return f
    for st in range(3): A.weave([], dma_stage(st))
    A.stamp(1)
    srd(A, R_D, P_WD, 1792*896); srd(A, R_O, P_WO, 448*896); srd(A, R_W, P_WS, WS_SIZE); srd(A, R_OUT, P_OUT, 2048*896)
    VXR = [[10 + 4*sl + s for s in range(4)] for sl in range(3)]
    VWR = [22, 23, 24]
    A(f"v_and_b32 v{T[2]}, 31, v0")
    A(f"v_lshrrev_b32 v{T[3]}, 5, v0")
    A(f"v_bfe_u32 v{T[4]}, v0, 1, 3")
    A(f"v_xor_b32 v{T[4]}, v{T[4]}, v{T[3]}")
    A(f"v_lshlrev_b32 v{T[4]}, 4, v{T[4]}")
    A(f"v_lshl_add_u32 v{VXR[0][0]}, v{T[2]}, 7, v{T[4]}")
    for s in range(1, 4): A(f"v_xor_b32 v{VXR[0][s]}, {32*s}, v{VXR[0][0]}")
    for sl in (1, 2):
        for s in range(4): A(f"v_add_u32 v{VXR[sl][s]}, {sl*SLOT}, v{VXR[0][s]}")
    A(f"v_bfe_u32 v{T[2]}, v0, 2, 2")
    A(f"v_lshl_add_u32 v{T[4]}, v{T[3]}, 3, v{T[2]}")
    A(f"v_lshlrev_b32 v{T[4]}, 8, v{T[4]}")
    A(f"v_xor_b32 v{T[5]}, s{S_WV}, v{T[2]}")
    A(f"v_lshl_add_u32 v{T[4]}, v{T[5]}, 6, v{T[4]}")
    A(f"v_bfe_u32 v{T[5]}, v0, 4, 1")
    A(f"v_lshl_add_u32 v{T[4]}, v{T[5]}, 5, v{T[4]}")
    A(f"v_and_b32 v{T[5]}, 3, v0")
    A(f"v_lshl_add_u32 v{T[4]}, v{T[5]}, 3, v{T[4]}")
    for sl in range(3): A(f"v_add_u32 v{VWR[sl]}, {sl*SLOT+GO_}, v{T[4]}")
    VB = [25, 26, 27, 28]
    VBR = [[29, 30, 31, 32], [33, 34, 35, 36]]
    VA2 = [46, 47, 48, 49, 50]
    VST = 51; VGO = 52; VZ = 53; VFL = 54; VFT = 55; VOM = [56, 57, 58, 59, 60]
    A(f"v_and_b32 v{T[2]}, 7, v0")
    A(f"v_lshlrev_b32 v{T[4]}, 1, v{T[1]}")
    A(f"v_xor_b32 v{T[2]}, v{T[2]}, v{T[4]}")
    A(f"v_mul_u32_u24 v{T[4]}, 896, v{T[0]}")
    A(f"v_lshl_add_u32 v{VB[0]}, v{T[2]}, 4, v{T[4]}")
    A(f"s_lshl_b32 s{S_T0}, s{S_CT}, 7")
    A(f"v_add_u32 v{VB[0]}, s{S_T0}, v{VB[0]}")
    for i in range(1, 4): A(f"v_add_u32 v{VB[i]}, {i*(7168-1024)}, v{VB[0]}")
    A(f"s_mul_i32 s{S_MB}, s{S_WV}, 12288")
    A(f"v_bfe_u32 v{T[2]}, v0, 2, 3")
    A(f"v_lshl_add_u32 v{T[4]}, v{T[3]}, 4, v{T[2]}")
    A(f"v_lshlrev_b32 v{T[4]}, 7, v{T[4]}")
    A(f"v_lshrrev_b32 v{T[2]}, 1, v{T[2]}")
    A(f"v_xor_b32 v{T[2]}, s{S_WV}, v{T[2]}")
    A(f"v_lshl_add_u32 v{T[4]}, v{T[2]}, 5, v{T[4]}")
    A(f"v_lshl_add_u32 v{T[4]}, v{T[5]}, 3, v{T[4]}")
    for u in range(4):
        A(f"v_xor_b32 v{VBR[0][u]}, {32*u}, v{T[4]}")
        A(f"v_add_u32 v{VBR[0][u]}, s{S_MB}, v{VBR[0][u]}")
        A(f"v_add_u32 v{VBR[1][u]}, {2*SLOT}, v{VBR[0][u]}")
    A(f"s_lshl_b32 s{S_T0}, s{S_R}, 1"); A(f"s_add_u32 s{S_T0}, s{S_T0}, s{S_HALF}"); A(f"s_mul_i32 s{S_T0}, s{S_T0}, {5*TB}")
    A(f"v_lshlrev_b32 v{VA2[0]}, 4, v0"); A(f"v_add_u32 v{VA2[0]}, s{S_T0}, v{VA2[0]}")
    for i in range(1, 5): A(f"v_add_u32 v{VA2[i]}, {i*TB}, v{VA2[0]}")
    A(f"v_bfe_u32 v{T[2]}, v0, 4, 1"); A(f"v_mul_u32_u24 v{T[2]}, {TB}, v{T[2]}")
    A(f"v_and_b32 v{T[4]}, 15, v0"); A(f"v_lshl_add_u32 v{T[4]}, v{T[3]}, 4, v{T[4]}")
    A(f"v_lshl_add_u32 v{VST}, v{T[4]}, 4, v{T[2]}")
    A(f"s_mul_i32 s{S_T0}, s{S_R}, 720"); A(f"s_lshl_b32 s{S_T1}, s{S_C}, 2"); A(f"s_add_u32 s{S_T0}, s{S_T0}, s{S_T1}")
    A(f"s_add_u32 s{S_T0}, s{S_T0}, s{S_WV}"); A(f"s_lshl_b32 s{S_T0}, s{S_T0}, 10")
    A(f"v_add_u32 v{VST}, s{S_T0}, v{VST}")
    A(f"v_mov_b32 v{VZ}, 0")
    A(f"s_lshl_b32 s{S_T0}, s{S_CT}, 1"); A(f"s_add_u32 s{S_C2}, s{S_C2}, s{S_T0}")
    A(f"s_cmp_ge_u32 s{S_C2}, 14"); A(f"s_cselect_b32 s{S_T0}, 14, 0"); A(f"s_sub_u32 s{S_C2}, s{S_C2}, s{S_T0}")
    if opt.norot: A(f"s_mov_b32 s{S_C2}, 0")
    S_CB = S_HALF + 0
    S_BC = 73
    A(f"s_mov_b32 s{S_BC}, s{S_C2}")

    REG_ORDER = [1, 2, 0]
    def unit(j):
        jj = j % 9
        return REG_ORDER[jj // 3], jj % 3
    def dma_b2(j):
        rg, ix = unit(j)
        f = []
        if j < 14:
            f.append((f"s_lshl_b32 s{S_SW}, s{S_BC}, 2", f"s_add_u32 s{S_SW}, s{S_SW}, s{S_WV}", f"s_mul_i32 s{S_SW}, s{S_SW}, {32*896}"))
            f.append((f"s_add_u32 m0, s{S_MB}, {rg*SLOT+ix*4096}", f"s_add_u32 s{S_BC}, s{S_BC}, 1"))
            f.append((f"s_cmp_eq_u32 s{S_BC}, 14", f"s_cselect_b32 s{S_BC}, 0, s{S_BC}"))
            R = R_D
        else:
            f.append((f"s_mul_i32 s{S_SW}, s{S_WV}, {4*28*896}", f"s_add_u32 m0, s{S_MB}, {rg*SLOT+ix*4096}", f"s_add_u32 s{S_SW}, s{S_SW}, {(j-14)*28*896}"))
            R = R_O
        for i in range(4): f.append(f"buffer_load_dwordx4 v{VB[i]}, {sr(R,4)}, s{S_SW} offen offset:{1024*i} lds")
        return f
    def rd_b2(j, dst):
        rg, ix = unit(j)
        st = 1 if rg == 2 else 0
        off = (0 if rg == 2 else rg * SLOT) + ix * 4096
        return [f"ds_read_b64_tr_b16 {ar(dst+4*u+2*rd,2)}, v{VBR[st][u]} offset:{off+rd*1024}" for u in range(4) for rd in range(2)]

    ACC = lambda b, mat: 64 + (b * 2 + mat) * 16
    FR = [0, 28]
    def reads(st, s, buf):
        sl = st % 3; o = FR[buf]
        g = [f"ds_read_b64_tr_b16 {ar(o+20+2*rd,2)}, v{VWR[sl]} offset:{s*4096+rd*1024}" for rd in range(2)]
        u = [f"ds_read_b64_tr_b16 {ar(o+24+2*rd,2)}, v{VWR[sl]} offset:{16384+s*4096+rd*1024}" for rd in range(2)]
        x = [f"ds_read_b128 {ar(o+4*b,4)}, v{VXR[sl][s]} offset:{b*4096}" for b in range(5)]
        return g + [x[0]] + u + x[1:]
    def mfmas(first, buf):
        o = FR[buf]; r = []
        for b in range(5):
            for mat in range(2):
                d = vr(ACC(b, mat), 16)
                r.append(f"v_mfma_f32_32x32x16_bf16 {d}, {ar(o+20+4*mat,4)}, {ar(o+4*b,4)}, {'0' if first else d}")
        return r
    A("s_waitcnt vmcnt(26)")
    A("s_barrier")
    A.stamp(2)
    A.many(reads(0, 0, 0))
    pend = []
    ks = 0
    for st in range(7):
        for s in range(4):
            buf = ks & 1
            if s == 3:
                if st < 6:
                    n = {0: 13, 1: 13, 2: 13, 3: 13, 4: 14, 5: 13}[st]
                    if st == 4: n = 14
                    if st == 5: n = 12
                    A(f"s_waitcnt vmcnt({n}) lgkmcnt(0)")
                else:
                    A("s_waitcnt lgkmcnt(0)")
                A("s_barrier")
                assert not pend
                if st + 3 < 7:
                    pend = dma_stage(st + 3)
                    if st == 3: pend.append(f"global_load_dword v{VGO}, v{VZ}, {sr(P_DBG,2)} sc1")
                else:
                    pend = sum((dma_b2(3 * (st - 4) + i) for i in range(3)), [])
            else:
                A("s_waitcnt lgkmcnt(0)")
            nxt = reads(st, s + 1, buf ^ 1) if s < 3 else (reads(st + 1, 0, buf ^ 1) if st < 6 else [])
            mf = mfmas(ks == 0, buf)
            left = {3: 4, 0: 3, 1: 2, 2: 1}[s]
            if st == 6 and s == 3: left = 1
            nd = -(-len(pend) // left)
            dm, pend = pend[:nd], pend[nd:]
            A.weave(mf[:5], nxt, per=2)
            A.weave(mf[5:], dm, per=1)
            ks += 1
    A.stamp(3)
    A.nop(12)
    TP = 224
    for b in range(5):
        g, u = ACC(b, 0), ACC(b, 1)
        t = TP + 8 * (b & 1)
        for i in range(16): A(f"v_max_f32 v{g+i}, 0, v{g+i}")
        for i in range(16): A(f"v_mul_f32 v{g+i}, v{g+i}, v{u+i}")
        for i in range(8): A(f"v_cvt_pk_bf16_f32 v{t+i}, v{g+2*i}, v{g+2*i+1}")
        A(f"s_mov_b32 s{S_T0}, {2*b*TB}")
        for jj in range(2):
            A(f"buffer_store_dwordx4 {vr(t+4*jj,4)}, v{VST}, {sr(R_W,4)}, s{S_T0} offen offset:{512*jj} sc1")
    HO = 56
    A("s_waitcnt vmcnt(10)")
    for j in range(9):
        A.many(rd_b2(j, HO + 16 * j))
        if j % 3 == 2:
            A("s_waitcnt lgkmcnt(0)")
            if j == 2:
                for jn in range(9, 12): A.weave([], dma_b2(jn))
    go_check(A, VGO, VZ)
    A("s_waitcnt vmcnt(12)")
    A.stamp(4)
    A(f"s_mul_i32 s{S_T0}, s{S_R}, 14"); A(f"s_add_u32 s{S_T0}, s{S_T0}, s{S_C}"); A(f"s_lshl_b32 s{S_T0}, s{S_T0}, 2"); A(f"s_add_u32 s{S_T0}, s{S_T0}, s{S_WV}")
    set_flag(A, S_T0, VFL, VFT)
    for jn in range(12, 18): A.weave([], dma_b2(jn))
    A(f"s_mul_i32 s{S_T0}, s{S_R}, 56"); A(f"s_add_u32 s{S_T0}, s{S_T0}, s{S_WV}"); A(f"s_lshl_b32 s{S_T0}, s{S_T0}, 7"); A(f"s_add_u32 s{S_T0}, s{S_T0}, {WS_FLAG+FH*128}")
    A(f"v_lshlrev_b32 v{VFL}, 9, v0"); A(f"v_add_u32 v{VFL}, s{S_T0}, v{VFL}")
    spin(A, VFL, VFT, 14)
    A.stamp(5)
    RING = [("v", 144 + 20 * i) for i in range(5)] + [("a", 0), ("a", 20), ("a", 232)]
    NR = len(RING)
    def a2reg(j, blk):
        k, b = RING[j % NR]
        return vr(b + 4 * blk, 4) if k == "v" else ar(b + 4 * blk, 4)
    def ld_a2(j):
        f = []
        if j < 14:
            f.append((f"s_lshl_b32 s{S_SX}, s{S_C2}, 2", f"s_add_u32 s{S_SX}, s{S_SX}, s{S_WV}", f"s_lshl_b32 s{S_SX}, s{S_SX}, 10"))
            f.append((f"s_add_u32 s{S_C2}, s{S_C2}, 1", f"s_cmp_eq_u32 s{S_C2}, 14", f"s_cselect_b32 s{S_C2}, 0, s{S_C2}"))
        else:
            f.append((f"s_lshl_b32 s{S_SX}, s{S_WV}, 12", f"s_add_u32 s{S_SX}, s{S_SX}, {(56+j-14)*1024}"))
        for blk in range(5):
            f.append(f"buffer_load_dwordx4 {a2reg(j, blk)}, v{VA2[blk]}, {sr(R_W,4)}, s{S_SX} offen sc1")
        return f
    ACC2 = lambda u, blk: 64 + (u * 5 + blk) * 4
    WB = [200, 216]
    def wreg(j, u): return ar((HO + 16 * j if j < 9 else WB[j & 1]) + 4 * u, 4)
    def mf2(j):
        r = []
        for blk in range(5):
            for u in range(4):
                d = vr(ACC2(u, blk), 4)
                r.append(f"v_mfma_f32_16x16x32_bf16 {d}, {wreg(j,u)}, {a2reg(j,blk)}, {'0' if j == 0 else d}")
        return r
    A(f"s_lshl_b32 s{S_T0}, s{S_R}, 1"); A(f"s_add_u32 s{S_T0}, s{S_T0}, s{S_HALF}"); A(f"s_mul_i32 s{S_T0}, s{S_T0}, 80")
    A(f"s_lshr_b32 s{S_T1}, s{S_T0}, 6")
    A(f"v_and_b32 v{T[0]}, 1, v0"); A(f"v_add_u32 v{T[0]}, s{S_T1}, v{T[0]}"); A(f"v_min_u32 v{T[0]}, 31, v{T[0]}")
    A(f"v_lshrrev_b32 v{T[1]}, 1, v0"); A(f"s_lshl_b32 s{S_T1}, s{S_WV}, 1"); A(f"v_add_u32 v{T[1]}, s{S_T1}, v{T[1]}")
    A(f"v_lshl_add_u32 v{T[0]}, v{T[1]}, 5, v{T[0]}"); A(f"v_lshlrev_b32 v{T[0]}, 7, v{T[0]}")
    A(f"v_add_u32 v{VFL}, {WS_FLAG+FO*128}, v{T[0]}")
    A(f"v_and_b32 v{T[2]}, 15, v0"); A(f"v_add_u32 v{T[2]}, s{S_T0}, v{T[2]}")
    A(f"v_mul_u32_u24 v{T[3]}, 896, v{T[2]}")
    A(f"v_lshlrev_b32 v{T[2]}, 2, v{T[2]}")
    A(f"s_lshl_b32 s{S_T1}, s{S_WV}, 15"); A(f"s_add_u32 s{S_T1}, s{S_T1}, {WS_OMG}")
    A(f"v_add_u32 v{T[2]}, s{S_T1}, v{T[2]}")
    PRE = NR - 1
    issued = 0
    for j in range(min(PRE, 14)):
        A.weave([], ld_a2(j)); issued += 1
    OPOLL = opt.opoll
    extra_after = {}
    seq = [("a2", j) for j in range(issued) for _ in range(5)]
    for j in range(18):
        fill = []
        if j == OPOLL:
            spin(A, VFL, VFT, 4); seq = []
            A.stamp(6)
            for blk in range(5):
                A(f"buffer_load_dword v{VOM[blk]}, v{T[2]}, {sr(R_W,4)}, 0 offen offset:{64*blk} sc1"); seq.append(("om", 0))
        last = max([i for i, e in enumerate(seq) if e == ("a2", j)], default=-1)
        if j == 14: last = max([last] + [i for i, e in enumerate(seq) if e[0] == "om"])
        w = f"vmcnt({len(seq)-1-last})" if last >= 0 else ""
        if j >= 9: w += " lgkmcnt(0)"
        if w.strip(): A("s_waitcnt " + w.strip())
        if j == 14:
            A.nop(8)
            for u in range(4):
                for blk in range(5):
                    for i in range(4): A(f"v_mul_f32 v{ACC2(u,blk)+i}, v{VOM[blk]}, v{ACC2(u,blk)+i}")
            A.nop(2)
        if 9 <= j + 1 < 18: fill += rd_b2(j + 1, WB[(j + 1) & 1])
        lim = 18 if j >= OPOLL else 14
        while issued < min(lim, j + NR) :
            fill += ld_a2(issued); seq += [("a2", issued)] * 5; issued += 1
        A.weave(mf2(j), fill, per=1)
    A.stamp(7)
    VRW = 1; VRR = [2, 3, 4]
    A(f"v_lshlrev_b32 v{VRW}, 4, v0")
    for u in range(1, 4):
        A(f"s_xor_b32 s{S_T1}, s{S_WV}, {u}"); A(f"s_mul_i32 s{S_T1}, s{S_T1}, 12288")
        A(f"v_add_u32 v{VRR[u-1]}, s{S_T1}, v{VRW}")
    A(f"v_add_u32 v{VRW}, s{S_MB}, v{VRW}")
    def roff(u, blk):
        i = (u - 1) * 5 + blk
        return i * 1024 if i < 10 else SLOT + (i - 10) * 1024
    A.nop(4)
    for u in range(1, 4):
        for blk in range(5): A(f"ds_write_b128 v{VRW}, {vr(ACC2(u,blk),4)} offset:{roff(u,blk)}")
    A("s_waitcnt lgkmcnt(0)")
    A("s_barrier")
    for blk in range(5):
        for u in range(1, 4): A(f"ds_read_b128 {vr(ACC2(u,blk),4)}, v{VRR[u-1]} offset:{roff(u,blk)}")
    A(f"v_lshrrev_b32 v{T[1]}, 4, v0"); A(f"v_lshl_add_u32 v{T[3]}, v{T[1]}, 3, v{T[3]}")
    A(f"s_lshl_b32 s{S_T0}, s{S_CT}, 7"); A(f"s_lshl_b32 s{S_T1}, s{S_WV}, 5"); A(f"s_add_u32 s{S_T0}, s{S_T0}, s{S_T1}")
    A(f"v_add_u32 v{T[3]}, s{S_T0}, v{T[3]}")
    for blk in range(5):
        A(f"s_waitcnt lgkmcnt({12-3*blk})")
        a0, a1, a2, a3 = (ACC2(u, blk) for u in range(4))
        for i in range(4): A(f"v_add_f32 v{a0+i}, v{a0+i}, v{a1+i}")
        for i in range(4): A(f"v_add_f32 v{a2+i}, v{a2+i}, v{a3+i}")
        for i in range(4): A(f"v_add_f32 v{a0+i}, v{a0+i}, v{a2+i}")
        A(f"v_cvt_pk_bf16_f32 v{a0}, v{a0}, v{a0+1}"); A(f"v_cvt_pk_bf16_f32 v{a0+1}, v{a0+2}, v{a0+3}")
        A(f"s_mov_b32 s{S_T0}, {16*896*blk}")
        A(f"buffer_store_dwordx2 {vr(a0,2)}, v{T[3]}, {sr(R_OUT,4)}, s{S_T0} offen {opt.outpol}")
    if opt.stamps:
        A("s_waitcnt vmcnt(0)"); A.stamp(8); write_stamps(A); diag_pad(A, "F")
    A("s_endpgm")

ASLOT = 49152; AK, AV = 32768, 40960
LOG2E = 0x3fb8aa3b
def phi(A, r, n, t):
    for i in range(n): A(f"v_mul_f32 v{t+i}, {LOG2E:#x}, v{r+i}")
    for i in range(n): A(f"v_exp_f32_e64 v{t+i}, v{t+i} clamp")
    for i in range(n): A(f"v_max_f32 v{r+i}, 0, v{r+i}")
    for i in range(n): A(f"v_add_f32 v{r+i}, v{r+i}, v{t+i}")
    for i in range(n): A(f"v_add_f32 v{r+i}, 0x358637bd, v{r+i}")

def att(A):
    opt = A.opt
    A.label("L_att")
    A(f"s_sub_u32 s{S_T0}, s{S_T0}, 3")
    A(f"s_lshr_b32 s{S_T2}, s{S_T0}, 2")
    A(f"s_lshl_b32 s{S_RT}, s{S_T1}, 1"); A(f"s_add_u32 s{S_RT}, s{S_RT}, s{S_T2}")
    A(f"s_and_b32 s{S_T0}, s{S_T0}, 3")
    A(f"s_lshl_b32 s{S_HP}, s{S_HALF}, 2"); A(f"s_add_u32 s{S_HP}, s{S_HP}, s{S_T0}")
    A(f"s_mul_i32 s{S_KC}, s{S_T2}, 3"); A(f"s_add_u32 s{S_KC}, s{S_KC}, s{S_T1}")
    A(f"s_lshl_b32 s{S_T0}, s{S_T0}, 1"); A(f"s_add_u32 s{S_KC}, s{S_KC}, s{S_T0}")
    mod7(A, S_KC)
    if opt.norot: A(f"s_mov_b32 s{S_KC}, 0")
    for i in range(7):
        A(f"s_mov_b32 s{S_K7+i}, s{S_KC}")
        if i < 6:
            A(f"s_add_u32 s{S_KC}, s{S_KC}, 1"); A(f"s_cmp_eq_u32 s{S_KC}, 7"); A(f"s_cselect_b32 s{S_KC}, 0, s{S_KC}")
    VX = [1, 2, 3, 4]; VW = [5, 6]
    T = [24, 25, 26, 27, 28, 29]
    A(f"v_lshrrev_b32 v{T[0]}, 3, v0"); A(f"v_lshrrev_b32 v{T[1]}, 4, v0")
    A(f"v_and_b32 v{T[2]}, 7, v0"); A(f"v_xor_b32 v{T[3]}, v{T[2]}, v{T[1]}")
    A(f"s_lshl_b32 s{S_T0}, s{S_RT}, 2"); A(f"s_add_u32 s{S_T0}, s{S_T0}, s{S_WV}"); A(f"s_lshl_b32 s{S_T0}, s{S_T0}, 6")
    A(f"v_add_u32 v{T[4]}, s{S_T0}, v{T[0]}"); A(f"v_mul_u32_u24 v{T[4]}, 896, v{T[4]}")
    A(f"v_lshl_add_u32 v{VX[0]}, v{T[3]}, 4, v{T[4]}")
    A(f"v_xor_b32 v{T[4]}, 64, v{VX[0]}")
    A(f"v_add_u32 v{VX[1]}, {6144}, v{T[4]}"); A(f"v_add_u32 v{VX[2]}, {2*6144}, v{VX[0]}"); A(f"v_add_u32 v{VX[3]}, {3*6144}, v{T[4]}")
    A(f"v_and_b32 v{T[3]}, 1, v{T[1]}"); A(f"v_lshlrev_b32 v{T[3]}, 2, v{T[3]}"); A(f"v_xor_b32 v{T[3]}, v{T[3]}, v{T[2]}")
    A(f"v_cmp_ne_u32 {sr(S_MASK,2)}, 7, v{T[3]}")
    A(f"v_min_u32 v{T[3]}, 6, v{T[3]}")
    A(f"s_lshl_b32 s{S_T0}, s{S_WV}, 4"); A(f"v_add_u32 v{T[4]}, s{S_T0}, v{T[0]}"); A(f"v_mul_u32_u24 v{T[4]}, 2688, v{T[4]}")
    A(f"v_lshl_add_u32 v{VW[0]}, v{T[3]}, 4, v{T[4]}")
    A(f"s_mul_i32 s{S_T0}, s{S_HP}, 112"); A(f"v_add_u32 v{VW[0]}, s{S_T0}, v{VW[0]}")
    A(f"v_add_u32 v{VW[1]}, {8*2688-1024}, v{VW[0]}")
    A(f"s_lshl_b32 s{S_MX}, s{S_WV}, 13"); A(f"s_lshl_b32 s{S_MW}, s{S_WV}, 11")
    A("s_waitcnt lgkmcnt(0)")
    srd(A, R_X, P_X, 2048*896); srd(A, R_A, P_QKV, 448*2688)
    S_SX2 = S_C2; S_SV = 73
    def dma_stage(st):
        sb = (st % 3) * ASLOT; kc = S_K7 + st; f = []
        f.append((f"s_lshl_b32 s{S_SX}, s{kc}, 7", f"s_add_u32 m0, s{S_MX}, {sb}", f"s_add_u32 s{S_SX2}, s{S_SX}, {32*896}"))
        for i in range(4): f.append(f"buffer_load_dwordx4 v{VX[i]}, {sr(R_X,4)}, s{S_SX} offen offset:{1024*i} lds")
        f.append((f"s_add_u32 m0, s{S_MX}, {sb+4096}", f"s_mul_i32 s{S_SW}, s{kc}, {64*2688}"))
        for i in range(4): f.append(f"buffer_load_dwordx4 v{VX[i]}, {sr(R_X,4)}, s{S_SX2} offen offset:{1024*i} lds")
        f.append((f"s_add_u32 m0, s{S_MW}, {sb+AK}", f"s_add_u32 s{S_SV}, s{S_SW}, 1792", f"s_add_u32 s{S_SW}, s{S_SW}, 896"))
        for i in range(2): f.append(f"buffer_load_dwordx4 v{VW[i]}, {sr(R_A,4)}, s{S_SW} offen offset:{1024*i} lds")
        f.append((f"s_add_u32 m0, s{S_MW}, {sb+AV}", "s_nop 0"))
        for i in range(2): f.append(f"buffer_load_dwordx4 v{VW[i]}, {sr(R_A,4)}, s{S_SV} offen offset:{1024*i} lds")
        return f
    def qloc(ch):
        return (1, ch * 8192) if ch < 4 else (2, (ch - 4) * 8192)
    def dma_q(ch):
        sl, off = qloc(ch)
        return [(f"s_mul_i32 s{S_SW}, s{S_K7+ch}, {64*2688}", f"s_add_u32 m0, s{S_MW}, {sl*ASLOT+off}"),
                (f"s_mov_b64 exec, {sr(S_MASK,2)}",
                 f"buffer_load_dwordx4 v{VW[0]}, {sr(R_A,4)}, s{S_SW} offen lds",
                 f"buffer_load_dwordx4 v{VW[1]}, {sr(R_A,4)}, s{S_SW} offen offset:1024 lds",
                 "s_mov_b64 exec, -1")]
    VG = [30, 20]
    A(f"s_add_u32 s{S_T0}, s{S_K7}, s{S_WV}"); A(f"s_add_u32 s{S_T1}, s{S_T0}, 4")
    mod7(A, S_T0); mod7(A, S_T1)
    A(f"s_lshl_b32 s{S_T0}, s{S_T0}, 7"); A(f"s_lshl_b32 s{S_T1}, s{S_T1}, 7")
    A(f"v_lshlrev_b32 v{T[5]}, 1, v0")
    A(f"v_add_u32 v{T[4]}, s{S_T0}, v{T[5]}"); A(f"v_add_u32 v{T[5]}, s{S_T1}, v{T[5]}")
    A(f"global_load_ushort v{VG[0]}, v{T[4]}, {sr(P_GW,2)}")
    A(f"global_load_ushort v{VG[1]}, v{T[5]}, {sr(P_GW,2)}")
    for st in range(3): A.weave([], dma_stage(st))
    A.stamp(1)
    A(f"v_mov_b32 v{VG[0]+1}, 0"); A(f"v_mov_b32 v{VG[1]+1}, 0")
    srd(A, R_W, P_WS, WS_SIZE)
    VXR = [7, 8, 9, 10]
    VXR2 = [11, 12, 13, 14]
    VWR = [[15, 16], [17, 18]]
    A(f"v_and_b32 v{T[2]}, 31, v0"); A(f"v_lshrrev_b32 v{T[3]}, 5, v0")
    A(f"v_bfe_u32 v{T[4]}, v0, 1, 3"); A(f"v_xor_b32 v{T[4]}, v{T[4]}, v{T[3]}"); A(f"v_lshlrev_b32 v{T[4]}, 4, v{T[4]}")
    A(f"v_lshl_add_u32 v{T[4]}, v{T[2]}, 7, v{T[4]}")
    for s in range(4):
        A(f"v_xor_b32 v{VXR[s]}, {32*s}, v{T[4]}"); A(f"v_add_u32 v{VXR[s]}, s{S_MX}, v{VXR[s]}")
        A(f"v_add_u32 v{VXR2[s]}, {2*ASLOT}, v{VXR[s]}")
    A(f"v_bfe_u32 v{T[2]}, v0, 2, 2")
    A(f"v_lshl_add_u32 v{T[4]}, v{T[3]}, 3, v{T[2]}"); A(f"v_lshlrev_b32 v{T[4]}, 7, v{T[4]}")
    A(f"v_and_b32 v{T[2]}, 2, v{T[2]}"); A(f"v_lshlrev_b32 v{T[2]}, 5, v{T[2]}")
    A(f"v_bfe_u32 v{T[5]}, v0, 4, 1"); A(f"v_lshlrev_b32 v{T[5]}, 2, v{T[5]}")
    A(f"v_and_b32 v{T[0]}, 3, v0"); A(f"v_add_u32 v{T[5]}, v{T[5]}, v{T[0]}"); A(f"v_lshlrev_b32 v{T[5]}, 3, v{T[5]}")
    WB0, WB1 = 32768, 32768 + 65536
    for hh in range(2):
        A(f"v_add_u32 v{T[0]}, {56*hh}, v{T[5]}"); A(f"v_xor_b32 v{T[0]}, v{T[0]}, v{T[2]}"); A(f"v_add_u32 v{T[0]}, v{T[0]}, v{T[4]}")
        A(f"v_add_u32 v{VWR[0][hh]}, {WB0}, v{T[0]}"); A(f"v_add_u32 v{VWR[1][hh]}, {WB1}, v{T[0]}")
    def wtr(dst, hh, addr):
        st = 0 if addr < WB1 else 1
        off = addr - (WB0, WB1)[st]
        assert 0 <= off < 65536
        return f"ds_read_b64_tr_b16 {ar(dst,2)}, v{VWR[st][hh]} offset:{off}"
    VGA = 19; VGO = 22; VZ = 23
    A(f"v_and_b32 v{T[0]}, 2, v0"); A(f"v_lshlrev_b32 v{T[0]}, 5, v{T[0]}"); A(f"v_xor_b32 v{T[0]}, 112, v{T[0]}")
    A(f"v_lshl_add_u32 v{T[0]}, v0, 7, v{T[0]}"); A(f"v_add_u32 v{T[0]}, s{S_MX}, v{T[0]}"); A(f"v_add_u32 v{VGA}, {ASLOT}, v{T[0]}")
    A(f"v_mov_b32 v{VZ}, 0")
    XR = lambda ks, b: (ks * 2 + b) * 4
    FR = [224, 240]
    AK_ = lambda b, hh: 64 + (b * 2 + hh) * 16
    AV_ = lambda b, hh: 128 + (b * 2 + hh) * 16
    AQ_ = lambda b, hh: 192 + (b * 2 + hh) * 16
    def reads1(st, s, buf):
        sl = st % 3; ks = st * 4 + s; o = FR[buf]
        xv = VXR2[s] if sl == 2 else VXR[s]; xo = 0 if sl == 2 else sl * ASLOT
        x = [f"ds_read_b128 {ar(XR(ks,b),4)}, v{xv} offset:{xo+b*4096}" for b in range(2)]
        w = [wtr(o + (mat * 2 + hh) * 4 + 2 * rd, hh, sl * ASLOT + (AK, AV)[mat] + s * 2048 + rd * 512) for mat in range(2) for hh in range(2) for rd in range(2)]
        return [x[0]] + w[:2] + [x[1]] + w[2:]
    def mf1(ks, buf):
        o = FR[buf]; r = []
        for mat in range(2):
            for hh in range(2):
                for b in range(2):
                    d = vr((AK_, AV_)[mat](b, hh), 16)
                    r.append(f"v_mfma_f32_32x32x16_bf16 {d}, {ar(XR(ks,b),4)}, {ar(o+(mat*2+hh)*4,4)}, {'0' if ks == 0 else d}")
        return r
    def reads2(ks, buf):
        sl, off = qloc(ks // 4); s = ks % 4; o = FR[buf]
        return [wtr(o + hh * 4 + 2 * rd, hh, sl * ASLOT + off + s * 2048 + rd * 512) for hh in range(2) for rd in range(2)]
    def mf2(ks, buf):
        o = FR[buf]; r = []
        for hh in range(2):
            for b in range(2):
                d = vr(AQ_(b, hh), 16)
                r.append(f"v_mfma_f32_32x32x16_bf16 {d}, {ar(o+hh*4,4)}, {ar(XR(ks,b),4)}, {'0' if ks == 0 else d}")
        return r
    A("s_waitcnt vmcnt(24)")
    A("s_barrier")
    A.stamp(2)
    A.many(reads1(0, 0, 0))
    pend = []; ks = 0
    for st in range(7):
        for s in range(4):
            buf = ks & 1
            if s == 3:
                n = {0: 12, 1: 12, 2: 12, 3: 12, 4: 13, 5: 8, 6: None}[st]
                A(f"s_waitcnt vmcnt({n}) lgkmcnt(0)" if n is not None else "s_waitcnt lgkmcnt(0)")
                A("s_barrier")
                assert not pend
                if st + 3 < 7:
                    pend = dma_stage(st + 3)
                    if st == 3: pend.append(f"global_load_dword v{VGO}, v{VZ}, {sr(P_DBG,2)} sc1")
                elif st == 4:
                    pend = [f"ds_write_b64 v{VGA}, {vr(VG[0],2)}"] + sum((dma_q(c) for c in range(4)), [])
                elif st == 5:
                    pend = [f"ds_write_b64 v{VGA}, {vr(VG[1],2)} offset:{ASLOT}"] + sum((dma_q(c) for c in range(4, 7)), [])
            else:
                A("s_waitcnt lgkmcnt(0)")
            nxt = reads1(st, s + 1, buf ^ 1) if s < 3 else (reads1(st + 1, 0, buf ^ 1) if st < 6 else [])
            mf = mf1(ks, buf)
            left = {3: 4, 0: 3, 1: 2, 2: 1}[s]
            nd = -(-len(pend) // left)
            dm, pend = pend[:nd], pend[nd:]
            A.weave(mf[:4], nxt, per=3)
            A.weave(mf[4:], dm, per=1)
            ks += 1
    A.stamp(3)
    A(f"v_and_b32 v{T[0]}, 31, v0")
    A(f"v_cmp_eq_u32 {sr(S_MASK,2)}, 28, v{T[0]}")
    A(f"v_cmp_gt_u32 vcc, 28, v{T[0]}")
    A(f"v_mov_b32 v{T[1]}, 0x3f803f80")
    A.nop(8)
    for b in range(2):
        for hh in range(2):
            r = AK_(b, hh); phi(A, r, 16, 32)
            for i in range(8): A(f"v_cvt_pk_bf16_f32 v{r+i}, v{r+2*i}, v{r+2*i+1}")
            for i in range(8): A(f"v_cndmask_b32 v{r+i}, 0, v{r+i}, vcc")
            r = AV_(b, hh)
            for i in range(8): A(f"v_cvt_pk_bf16_f32 v{r+i}, v{r+2*i}, v{r+2*i+1}")
            for i in range(8): A(f"v_cndmask_b32 v{r+i}, v{r+i}, v{T[1]}, {sr(S_MASK,2)}")
    A.nop(2)
    KV = [32, 48]
    for b in range(2):
        for s in range(2):
            for hh in range(2):
                d = vr(KV[hh], 16)
                A(f"v_mfma_f32_32x32x16_bf16 {d}, {vr(AK_(b,hh)+4*s,4)}, {vr(AV_(b,hh)+4*s,4)}, {'0' if (b, s) == (0, 0) else d}")
    A(f"v_lshlrev_b32 v{T[2]}, 4, v0")
    A(f"v_add_u32 v{T[0]}, s{S_MX}, v{T[2]}")
    A(f"v_add_u32 v{T[1]}, s{S_MW}, v{T[2]}")
    A.nop(12)
    for i in range(8): A(f"ds_write_b128 v{T[0]}, {vr(32+4*i,4)} offset:{1024*i}")
    A("s_waitcnt vmcnt(0) lgkmcnt(0)")
    A("s_barrier")
    for w in range(4):
        for i in range(2): A(f"ds_read_b128 {vr(32+8*w+4*i,4)}, v{T[1]} offset:{8192*w+1024*i}")
    A.many(reads2(0, 0))
    A(f"s_lshl_b32 s{S_T0}, s{S_HP}, 3"); A(f"s_add_u32 s{S_T0}, s{S_T0}, s{S_RT}"); A(f"s_lshl_b32 s{S_T0}, s{S_T0}, 2"); A(f"s_add_u32 s{S_T0}, s{S_T0}, s{S_WV}")
    A(f"s_lshl_b32 s{S_T1}, s{S_T0}, 11"); A(f"s_add_u32 s{S_T1}, s{S_T1}, {WS_KVP}")
    A("s_waitcnt lgkmcnt(4)")
    for i in range(8): A(f"v_add_f32 v{32+i}, v{32+i}, v{40+i}")
    for i in range(8): A(f"v_add_f32 v{48+i}, v{48+i}, v{56+i}")
    for i in range(8): A(f"v_add_f32 v{32+i}, v{32+i}, v{48+i}")
    for i in range(2): A(f"buffer_store_dwordx4 {vr(32+4*i,4)}, v{T[2]}, {sr(R_W,4)}, s{S_T1} offen offset:{1024*i} sc1")
    go_check(A, VGO, VZ)
    A(f"s_add_u32 s{S_T0}, s{S_T0}, {FKV}")
    FLAG_AT = 3; POLL_AT = opt.kvpoll
    VFL, VFT = 20, 21
    for ks in range(28):
        buf = ks & 1
        A("s_waitcnt lgkmcnt(0)")
        if ks == FLAG_AT:
            A("s_waitcnt vmcnt(0)")
            A.stamp(4)
            set_flag(A, S_T0, VFL, VFT)
        if ks == POLL_AT:
            A(f"s_lshl_b32 s{S_T0}, s{S_HP}, 5"); A(f"s_add_u32 s{S_T0}, s{S_T0}, s{S_WV}")
            A(f"s_lshl_b32 s{S_T1}, s{S_T0}, 7"); A(f"s_add_u32 s{S_T1}, s{S_T1}, {WS_FLAG+FKV*128}")
            A(f"v_lshlrev_b32 v{VFL}, 9, v0"); A(f"v_add_u32 v{VFL}, s{S_T1}, v{VFL}")
            spin(A, VFL, VFT, 8)
            A.stamp(5)
            A(f"s_lshl_b32 s{S_T1}, s{S_T0}, 11"); A(f"s_add_u32 s{S_T1}, s{S_T1}, {WS_KVP}")
            for p in range(8):
                for i in range(2): A(f"buffer_load_dwordx4 {vr(64+8*p+4*i,4)}, v{T[2]}, {sr(R_W,4)}, s{S_T1} offen offset:{1024*i} sc1")
                if p < 7: A(f"s_add_u32 s{S_T1}, s{S_T1}, 8192")
        A.weave(mf2(ks, buf), reads2(ks + 1, buf ^ 1) if ks < 27 else [], per=2)
    SP = 3 * ASLOT
    A("s_waitcnt vmcnt(0)")
    for stp in (32, 16, 8):
        for i in range(stp): A(f"v_add_f32 v{64+i}, v{64+i}, v{64+stp+i}")
    for i in range(4): A(f"v_cvt_pk_bf16_f32 v{64+i}, v{64+2*i}, v{64+2*i+1}")
    A(f"v_add_u32 v{T[0]}, {SP}, v{T[2]}")
    A(f"s_lshl_b32 s{S_T0}, s{S_WV}, 10"); A(f"v_add_u32 v{T[1]}, s{S_T0}, v{T[0]}")
    A(f"ds_write_b128 v{T[1]}, {vr(64,4)}")
    A("s_waitcnt lgkmcnt(0)")
    A("s_barrier")
    for i in range(4): A(f"ds_read_b128 {vr(64+4*i,4)}, v{T[0]} offset:{1024*i}")
    A.stamp(6)
    VGT = [80, 82]
    A(f"v_cmp_gt_u32 vcc, 32, v0")
    for b in range(2):
        A(f"v_mov_b32 v{VGT[b]}, v{AQ_(b,1)+12}"); A(f"v_mov_b32 v{VGT[b]+1}, v{AQ_(b,1)+12}")
    A.nop(2)
    for b in range(2): A(f"v_permlane32_swap_b32 v{VGT[b]}, v{VGT[b]+1}")
    A.nop(2)
    for b in range(2): A(f"v_mul_f32 v{VGT[b]}, {0xbfb8aa3b:#x}, v{VGT[b]+1}")
    for b in range(2): A(f"v_exp_f32 v{VGT[b]}, v{VGT[b]}")
    A.nop(1)
    for b in range(2): A(f"v_add_f32 v{VGT[b]}, 1.0, v{VGT[b]}")
    for b in range(2): A(f"v_rcp_f32 v{VGT[b]+1}, v{VGT[b]}")
    A.nop(1)
    for b in range(2): A(f"v_sub_f32 v{VGT[b]}, 1.0, v{VGT[b]+1}")
    A(f"v_cndmask_b32 v84, v{VGT[1]}, v{VGT[0]}, vcc")
    A(f"s_lshl_b32 s{S_T0}, s{S_RT}, 2"); A(f"s_add_u32 s{S_T0}, s{S_T0}, s{S_WV}")
    A(f"s_lshl_b32 s{S_T1}, s{S_T0}, 8"); A(f"s_lshl_b32 s{S_T2}, s{S_HP}, 14"); A(f"s_add_u32 s{S_T1}, s{S_T1}, s{S_T2}"); A(f"s_add_u32 s{S_T1}, s{S_T1}, {WS_OMG}")
    A(f"v_lshlrev_b32 v85, 2, v0")
    A(f"buffer_store_dword v84, v85, {sr(R_W,4)}, s{S_T1} offen sc1")
    for b in range(2):
        for hh in range(2):
            r = AQ_(b, hh); phi(A, r, 16, 32)
            for i in range(8): A(f"v_cvt_pk_bf16_f32 v{r+i}, v{r+2*i}, v{r+2*i+1}")
            for i in (6, 7): A(f"v_cndmask_b32 v{r+i}, 0, v{r+i}, vcc")
    A("s_waitcnt lgkmcnt(0)")
    A.nop(2)
    AO = AV_
    for s in range(2):
        for b in range(2):
            for hh in range(2):
                d = vr(AO(b, hh), 16)
                A(f"v_mfma_f32_32x32x16_bf16 {d}, {vr(64+(hh*2+s)*4,4)}, {vr(AQ_(b,hh)+4*s,4)}, {'0' if s == 0 else d}")
    A(f"v_bfe_u32 v{T[0]}, v0, 4, 1"); A(f"v_mul_u32_u24 v{T[0]}, {TB}, v{T[0]}")
    A(f"v_and_b32 v{T[1]}, 15, v0"); A(f"v_lshrrev_b32 v{T[3]}, 5, v0"); A(f"v_lshl_add_u32 v{T[1]}, v{T[3]}, 4, v{T[1]}")
    A(f"v_lshl_add_u32 v{T[0]}, v{T[1]}, 4, v{T[0]}")
    A(f"s_mul_i32 s{S_T1}, s{S_T0}, 288"); A(f"s_lshl_b32 s{S_T2}, s{S_HP}, 1"); A(f"s_add_u32 s{S_T1}, s{S_T1}, s{S_T2}")
    A(f"s_add_u32 s{S_T1}, s{S_T1}, 56"); A(f"s_lshl_b32 s{S_T1}, s{S_T1}, 10")
    A(f"s_add_u32 s{S_T2}, s{S_T1}, {2*TB}")
    A.nop(12)
    tl = [(b, hh) for b in range(2) for hh in range(2)]
    for n, (b, hh) in enumerate(tl):
        A(f"v_mov_b32 v{88+2*n}, v{AO(b,hh)+12}"); A(f"v_mov_b32 v{89+2*n}, v{AO(b,hh)+12}")
    A.nop(2)
    for n in range(4): A(f"v_permlane32_swap_b32 v{88+2*n}, v{89+2*n}")
    A.nop(2)
    for n in range(4): A(f"v_add_f32 v{89+2*n}, 0x358637bd, v{89+2*n}")
    for n in range(4): A(f"v_rcp_f32 v{89+2*n}, v{89+2*n}")
    A.nop(1)
    for n, (b, hh) in enumerate(tl): A(f"v_mul_f32 v{89+2*n}, v{89+2*n}, v{VGT[b]+1}")
    for n, (b, hh) in enumerate(tl):
        r = AO(b, hh)
        for i in range(16): A(f"v_mul_f32 v{r+i}, v{89+2*n}, v{r+i}")
        for i in range(8): A(f"v_cvt_pk_bf16_f32 v{r+i}, v{r+2*i}, v{r+2*i+1}")
        for i in (6, 7): A(f"v_cndmask_b32 v{r+i}, 0, v{r+i}, vcc")
        for jj in range(2):
            A(f"buffer_store_dwordx4 {vr(r+4*jj,4)}, v{T[0]}, {sr(R_W,4)}, s{(S_T1,S_T2)[b]} offen offset:{1024*hh+512*jj} sc1")
    A.stamp(7)
    A(f"s_lshl_b32 s{S_T1}, s{S_HP}, 5"); A(f"s_add_u32 s{S_T0}, s{S_T0}, s{S_T1}"); A(f"s_add_u32 s{S_T0}, s{S_T0}, {FO}")
    A("s_waitcnt vmcnt(0)")
    set_flag(A, S_T0, VFL, VFT)
    if opt.stamps:
        A.stamp(8); write_stamps(A); diag_pad(A, "A")
    A("s_endpgm")

def init(A):
    A.label("L_init")
    A(f"s_cmp_lg_u32 s{S_CT}, 7"); A("s_cbranch_scc1 L_exit")
    A(f"s_cmp_lg_u32 s{S_HALF}, 0"); A("s_cbranch_scc1 L_exit")
    A(f"s_lshl_b32 s{S_T0}, s{S_WV}, 6")
    A(f"v_add_u32 v1, s{S_T0}, v0"); A("v_lshlrev_b32 v1, 7, v1"); A("v_mov_b32 v2, 0"); A("v_mov_b32 v3, 1")
    A("s_waitcnt lgkmcnt(0)")
    srd(A, R_W, P_WS, WS_SIZE)
    for i in range(5):
        A(f"s_mov_b32 s{S_T0}, {WS_FLAG + i*256*128}")
        A(f"buffer_store_dword v2, v1, {sr(R_W,4)}, s{S_T0} offen sc1")
    A("s_waitcnt vmcnt(0)")
    A("s_barrier")
    A(f"s_cmp_lg_u32 s{S_WV}, 0"); A("s_cbranch_scc1 L_exit")
    A("s_mov_b64 exec, 1")
    A(f"global_store_dword v2, v3, {sr(P_DBG,2)} sc1")
    if A.opt.stamps:
        A("s_mov_b64 exec, -1"); A("s_waitcnt vmcnt(0)"); A.stamp(8); write_stamps(A)
    A.label("L_exit")
    A("s_endpgm")

def generate(**kw):
    d = dict(stamps=False, norot=False, opoll=9, kvpoll=20, outpol="", pad=None, padrole="F")
    d.update(kw)
    opt = Opt(**d)
    A = Asm(opt)
    prologue(A); ffn(A); att(A); init(A)
    ref = open(os.path.join(os.path.dirname(os.path.abspath(__file__)), "header.txt")).read()
    head = ref + "; @launch grid=(256,1,1) block=(256,1,1) lds=163840\n"
    head += f'.amdgcn_target "amdgcn-amd-amdhsa--gfx950"\n.text\n.globl {NAME}_kernel\n.p2align 8\n.type {NAME}_kernel,@function\n{NAME}_kernel:\n'
    tail = f"""
.section .rodata,"a"
.p2align 6
.amdhsa_kernel {NAME}_kernel
  .amdhsa_next_free_vgpr 512
  .amdhsa_next_free_sgpr 102
  .amdhsa_accum_offset 256
  .amdhsa_group_segment_fixed_size 0
  .amdhsa_kernarg_size 88
  .amdhsa_user_sgpr_count 2
  .amdhsa_user_sgpr_kernarg_segment_ptr 1
  .amdhsa_system_sgpr_workgroup_id_x 1
.end_amdhsa_kernel
"""
    return head + "\n".join(A.l) + tail

if __name__ == "__main__":
    out = sys.argv[1]
    kw = {}
    for a in sys.argv[2:]:
        k, v = a.split("=")
        kw[k] = int(v) if v.lstrip("-").isdigit() else v
    open(out, "w").write(generate(**kw))
```

```python
import sys, os
NAME = "gated_mix__linear_attn_block__glu_gated_reglu__prompt"
MB = 1 << 20
WS_A2 = 0
WS_KVP = 10 * MB
WS_OMG = 11 * MB
WS_FLAG = 12 * MB
WS_STAMP = 14 * MB
WS_SIZE = 16 * MB
FH, FKV, FO, NFLAG = 0, 728, 984, 1240
SPIN_MAX = 400000
TB = 72 * 1024
LOG2E = 0x3fb8aa3b
EPS = 0x358637bd

class Opt:
    def __init__(self, **kw): self.__dict__.update(kw)

class I:
    def __init__(self, t, tag): self.t = t; self.tag = tag

def cost(t):
    if t.startswith(("v_exp", "v_rcp")): return 2
    return 1

class Asm:
    def __init__(self, opt):
        self.l = []; self.opt = opt; self.nlab = 0
        self.vm = []; self.lg = []
    def __call__(self, s):
        if isinstance(s, (tuple, list)):
            for x in s: self(x)
            return
        if callable(s): s(); return
        tag = None
        if isinstance(s, I): s, tag = s.t, s.tag
        if s.startswith(("buffer_", "global_")): self.vm.append(tag)
        elif s.startswith("ds_"): self.lg.append(tag)
        self.l.append("    " + s)
    def label(self, s): self.l.append(s + ":")
    def newlab(self, p):
        self.nlab += 1
        return f"L_{p}_{self.nlab}"
    def nop(self, n):
        while n > 0:
            k = min(n, 16); self(f"s_nop {k-1}"); n -= k
    def _cnt(self, lst, tags, mx):
        if tags == "all":
            if not lst: return None
            lst.clear(); return 0
        last = max((i for i, t in enumerate(lst) if t in tags), default=-1)
        if last < 0: return None
        n = min(len(lst) - 1 - last, mx)
        del lst[:len(lst) - n]
        return n
    def wait(self, vm=(), lg=()):
        a = self._cnt(self.vm, vm, 63); b = self._cnt(self.lg, lg, 15)
        w = []
        if a is not None: w.append(f"vmcnt({a})")
        if b is not None: w.append(f"lgkmcnt({b})")
        if w: self.l.append("    s_waitcnt " + " ".join(w))
    def stamp(self, i, mode=0):
        if self.opt.stamps and (mode == self.opt.smode or i in (0, 8)): self(f"s_memrealtime s[{ST(i)}:{ST(i)+1}]")
    def weave(self, mf, *streams):
        for i, m in enumerate(mf):
            self(m)
            for st in streams:
                q, per = st[0], st[1]
                if len(st) > 2 and i < st[2]: continue
                n = 0
                while q and n < per:
                    f = q.pop(0); self(f)
                    if isinstance(f, (tuple, list)): n += len(f)
                    elif callable(f): n += 1
                    else: n += cost(f.t if isinstance(f, I) else f)
    def flush(self, q):
        while q: self(q.pop(0))

def vr(b, n): return f"v[{b}:{b+n-1}]"
def ar(b, n): return f"a[{b}:{b+n-1}]"
def sr(b, n): return f"s[{b}:{b+n-1}]"

P_X, P_QKV, P_WO, P_BX, P_WG, P_WU, P_WD, P_GW = 4, 6, 8, 10, 12, 14, 16, 18
P_OUT, P_DBG, P_WS = 20, 22, 24
R_X, R_A, R_B, R_D, R_O, R_W, R_OUT = 28, 32, 36, 40, 44, 48, 52
S_WV, S_R, S_CT, S_HALF, S_C, S_J, S_SX, S_SW = 56, 57, 58, 59, 60, 61, 62, 63
S_T0, S_T1, S_T2, S_T3 = 64, 65, 66, 67
S_MX, S_MW, S_MB, S_CNT = 68, 69, 70, 71
S_C2, S_BC, S_MASK = 72, 73, 74
S_K7 = 76
S_XO = 83
S_RT, S_HP = 57, 58
S_ST = 84
S_PC = 74
def ST(i): return S_ST + 2 * i if i < 6 else {6: 100, 7: 10, 8: 26}[i]

def srd(A, r, p, size, bias=0):
    if bias:
        A(f"s_sub_u32 s{r}, s{p}, {bias}"); A(f"s_subb_u32 s{r+1}, s{p+1}, 0")
    else:
        A(f"s_mov_b32 s{r}, s{p}"); A(f"s_mov_b32 s{r+1}, s{p+1}")
    A(f"s_mov_b32 s{r+2}, {size+bias}"); A(f"s_mov_b32 s{r+3}, 0x20000")

def modn(A, s, n, mul):
    A(f"s_mul_i32 s{S_T3}, s{s}, {mul}"); A(f"s_lshr_b32 s{S_T3}, s{S_T3}, 8")
    A(f"s_mul_i32 s{S_T3}, s{S_T3}, {n}"); A(f"s_sub_u32 s{s}, s{s}, s{S_T3}")

def korder(A, stages):
    d = A.opt.rotd
    for st in stages:
        k = S_K7 + st
        if st == 0 and d > 1: modn(A, S_J, d, {2: 128, 3: 86, 7: 37}[d])
        if d > 1 and st < d * (7 // d):
            A(f"s_add_u32 s{k}, s{S_J}, {st % d}")
            if st % d:
                A(f"s_cmp_ge_u32 s{k}, {d}"); A(f"s_cselect_b32 s{S_T3}, {d}, 0"); A(f"s_sub_u32 s{k}, s{k}, s{S_T3}")
            A(f"s_add_u32 s{k}, s{k}, s{S_XO}")
            if st >= d: A(f"s_add_u32 s{k}, s{k}, {st - st % d}")
        else:
            A(f"s_add_u32 s{k}, s{S_XO}, {st}")
        A(f"s_cmp_ge_u32 s{k}, 7"); A(f"s_cselect_b32 s{S_T3}, 7, 0"); A(f"s_sub_u32 s{k}, s{k}, s{S_T3}")

R_P = 96
def pf_setup(A, va, vb, vt):
    if not A.opt.pf: return
    t0, t1, t2, t3 = S_T0, S_T1, S_T2, S_T3
    A(f"s_cmp_eq_u32 s{S_WV}, 1"); A(f"s_cselect_b64 {sr(R_P,2)}, {sr(P_WG,2)}, {sr(P_WU,2)}")
    A(f"s_cmp_eq_u32 s{S_WV}, 3"); A(f"s_cselect_b64 {sr(R_P,2)}, {sr(P_QKV,2)}, {sr(R_P,2)}")
    A(f"s_cselect_b32 s{R_P+2}, {448*2688}, {0}"); A(f"s_cselect_b32 s{t0}, 16, 21"); A(f"s_cselect_b32 s{t1}, 21, 28")
    A(f"s_cselect_b32 s{t2}, 21, 28"); A(f"s_mul_i32 s{t2}, s{t2}, {192*128}")
    A(f"s_cmp_lg_u32 s{S_WV}, 3"); A(f"s_cselect_b32 s{R_P+2}, {448*3584}, s{R_P+2}")
    A(f"s_mov_b32 s{R_P+3}, 0x20000")
    A(f"s_cmp_eq_u32 s{S_WV}, 0"); A(f"s_cselect_b64 {sr(R_P,2)}, {sr(P_X,2)}, {sr(R_P,2)}")
    A(f"s_cselect_b32 s{R_P+2}, {2048*896}, s{R_P+2}")
    L1 = A.newlab("pfx"); L2 = A.newlab("pfd")
    A(f"s_cbranch_scc1 {L1}")
    A(f"s_mul_i32 s{t3}, s{t0}, s2"); A(f"s_sub_u32 s{t0}, s{t0}, 1"); A(f"v_min_u32 v{va}, s{t0}, v0"); A(f"v_add_u32 v{va}, s{t3}, v{va}"); A(f"v_lshlrev_b32 v{va}, 7, v{va}")
    A(f"s_mul_i32 s{t3}, s{t1}, s2"); A(f"s_sub_u32 s{t1}, s{t1}, 1"); A(f"v_min_u32 v{vb}, s{t1}, v0"); A(f"v_add_u32 v{vb}, s{t3}, v{vb}")
    A(f"v_lshl_add_u32 v{vb}, v{vb}, 7, s{t2}")
    A(f"s_branch {L2}")
    A.label(L1)
    A(f"v_bfe_u32 v{vt}, v0, 2, 3"); A(f"s_lshl_b32 s{t3}, s2, 3"); A(f"v_add_u32 v{vt}, s{t3}, v{vt}"); A(f"v_mul_u32_u24 v{vt}, 896, v{vt}")
    A(f"v_and_b32 v{va}, 3, v0"); A(f"v_lshl_add_u32 v{vb}, v{va}, 7, v{vt}"); A(f"v_add_u32 v{vb}, 384, v{vb}")
    A(f"v_min_u32 v{va}, 2, v{va}"); A(f"v_lshl_add_u32 v{va}, v{va}, 7, v{vt}")
    A.label(L2)
def pf_load(A, va, vd):
    return [I(f"buffer_load_dword v{vd}, v{va}, {sr(R_P,4)}, 0 offen", "pf")] if A.opt.pf else []

def poll_load(vaddr, vtmp, tag):
    return I(f"buffer_load_dword v{vtmp}, v{vaddr}, {sr(R_W,4)}, 0 offen sc1", tag)

def check(A, vaddr, vtmp, tag, dbg=False):
    L = A.newlab("chk"); D = A.newlab("ok")
    A.wait(vm=[tag])
    A(f"v_cmp_ne_u32 vcc, 1, v{vtmp}")
    A(f"s_mov_b32 s{S_CNT}, 0")
    A(f"s_cbranch_vccz {D}")
    A.label(L)
    if dbg: A.l.append(f"    global_load_dword v{vtmp}, v{vaddr}, {sr(P_DBG,2)} sc1")
    else: A.l.append(f"    buffer_load_dword v{vtmp}, v{vaddr}, {sr(R_W,4)}, 0 offen sc1")
    A(f"s_add_u32 s{S_CNT}, s{S_CNT}, 1")
    A(f"s_cmp_gt_u32 s{S_CNT}, {SPIN_MAX}")
    A("s_waitcnt vmcnt(0)")
    A(f"s_cbranch_scc1 {D}")
    A(f"v_cmp_ne_u32 vcc, 1, v{vtmp}")
    A(f"s_cbranch_vccnz {L}")
    A.label(D)

def set_flag(A, sofs, vz, vone):
    A("s_mov_b64 exec, 1")
    A(f"buffer_store_dword v{vone}, v{vz}, {sr(R_W,4)}, s{sofs} offen sc1")
    A("s_mov_b64 exec, -1")

def diag_pad(A, role):
    o = A.opt
    if o.pad is None or o.padrole != role: return
    L = A.newlab("pad")
    A("s_waitcnt lgkmcnt(0)")
    A(f"s_sub_u32 s{S_T0}, s{ST(o.pad)}, s{S_ST}")
    A(f"s_mul_i32 s{S_T0}, s{S_T0}, 10"); A(f"s_add_u32 s{S_T0}, s{S_T0}, 5000")
    A(f"s_min_u32 s{S_T0}, s{S_T0}, 100000")
    A.label(L)
    A("s_sleep 4")
    A(f"s_memrealtime s[{S_MASK}:{S_MASK+1}]"); A("s_waitcnt lgkmcnt(0)")
    A(f"s_sub_u32 s{S_T1}, s{S_MASK}, s{S_ST}")
    A(f"s_cmp_lt_u32 s{S_T1}, s{S_T0}"); A(f"s_cbranch_scc1 {L}")

def write_stamps(A):
    if not A.opt.stamps: return
    A("s_waitcnt lgkmcnt(0)")
    A(f"s_lshl_b32 s{S_T0}, s2, 2"); A(f"s_add_u32 s{S_T0}, s{S_T0}, s{S_WV}"); A(f"s_lshl_b32 s{S_T0}, s{S_T0}, 6")
    A(f"s_add_u32 s{S_T0}, s{S_T0}, {WS_STAMP}")
    A("v_mov_b32 v1, 0")
    for i in range(12):
        A(f"v_mov_b32 v{4+i}, s{ST(i)}" if i < 9 else f"v_mov_b32 v{4+i}, 0")
    A("s_mov_b64 exec, 1")
    for i in range(3):
        A(f"buffer_store_dwordx4 {vr(4+4*i,4)}, v1, {sr(R_W,4)}, s{S_T0} offen offset:{16*i}")
    A("s_mov_b64 exec, -1")

def roles():
    r = []
    for i in range(256):
        slot = i >> 3; pair = (i >> 1) & 3
        if slot >= 11: r.append("F")
        elif slot >= 3: r.append("A")
        elif slot == 0: r.append("I")
        else: r.append("F" if slot - 1 + 2 * pair < 7 else "-")
    return r

def prologue(A):
    A.stamp(0)
    A("s_cmp_ge_u32 s2, 256"); A("s_cbranch_scc1 L_exit")
    A(f"s_load_dwordx16 {sr(4,16)}, s[0:1], 0")
    A(f"s_load_dwordx4 {sr(20,4)}, s[0:1], 64")
    A(f"s_load_dwordx2 {sr(24,2)}, s[0:1], 80")
    if A.opt.stamps:
        for i in (1, 2, 3, 4, 5, 6, 8): A(f"s_mov_b64 s[{ST(i)}:{ST(i)+1}], 0")
    A("v_lshrrev_b32 v1, 6, v0")
    A("v_and_b32 v0, 63, v0")
    A(f"v_readfirstlane_b32 s{S_WV}, v1")
    A(f"s_lshr_b32 s{S_T0}, s2, 3")
    A(f"s_bfe_u32 s{S_T1}, s2, 0x20001")
    A(f"s_and_b32 s{S_HALF}, s2, 1")
    if A.opt.xrot:
        A(f"s_mul_i32 s{S_XO}, s{S_HALF}, 3"); A(f"s_lshl_b32 s{S_T2}, s{S_T1}, 1"); A(f"s_add_u32 s{S_XO}, s{S_XO}, s{S_T2}")
        A(f"s_cmp_ge_u32 s{S_XO}, 7"); A(f"s_cselect_b32 s{S_T3}, 7, 0"); A(f"s_sub_u32 s{S_XO}, s{S_XO}, s{S_T3}")
    else:
        A(f"s_mov_b32 s{S_XO}, 0")
    A(f"s_cmp_ge_u32 s{S_T0}, 11"); A("s_cbranch_scc1 L_dec_ffn")
    A(f"s_cmp_ge_u32 s{S_T0}, 3"); A("s_cbranch_scc1 L_att")
    A(f"s_cmp_eq_u32 s{S_T0}, 0"); A("s_cbranch_scc1 L_help")
    A(f"s_lshl_b32 s{S_CT}, s{S_T1}, 1"); A(f"s_add_u32 s{S_CT}, s{S_CT}, s{S_T0}"); A(f"s_sub_u32 s{S_CT}, s{S_CT}, 1")
    A(f"s_cmp_ge_u32 s{S_CT}, 7"); A("s_cbranch_scc1 L_help")
    A(f"s_mov_b32 s{S_R}, 12")
    A(f"s_mov_b32 s{S_J}, s{S_CT}")
    A(f"s_mov_b32 s{S_C2}, 7")
    A("s_branch L_ffn")
    A.label("L_dec_ffn")
    A(f"s_sub_u32 s{S_T0}, s{S_T0}, 11")
    A(f"s_mul_i32 s{S_T2}, s{S_T0}, 37"); A(f"s_lshr_b32 s{S_T2}, s{S_T2}, 8")
    A(f"s_mul_i32 s{S_T3}, s{S_T2}, 7"); A(f"s_sub_u32 s{S_CT}, s{S_T0}, s{S_T3}")
    A(f"s_mul_i32 s{S_R}, s{S_T1}, 3"); A(f"s_add_u32 s{S_R}, s{S_R}, s{S_T2}")
    A(f"s_mul_i32 s{S_C2}, s{S_T2}, 5")
    if A.opt.rotd == 7: A(f"s_lshr_b32 s{S_T2}, s{S_C2}, 1")
    A(f"s_add_u32 s{S_J}, s{S_T2}, s{S_CT}")
    A(f"s_add_u32 s{S_C2}, s{S_C2}, s{S_T1}")

SLOT = 53248; XO, GO_ = 0, 20480
def ffn(A):
    opt = A.opt
    A.vm = []; A.lg = []
    A.label("L_ffn")
    korder(A, [0])
    A(f"s_mul_i32 s{S_C}, s{S_HALF}, 7"); A(f"s_add_u32 s{S_C}, s{S_C}, s{S_CT}")
    VX = [1, 2, 3, 4, 5]; VW = [6, 7, 8, 9]
    T = [40, 41, 42, 43, 44, 45]
    A(f"v_lshrrev_b32 v{T[0]}, 3, v0")
    A(f"v_lshrrev_b32 v{T[1]}, 4, v0")
    A(f"v_and_b32 v{T[2]}, 7, v0")
    A(f"v_xor_b32 v{T[2]}, v{T[2]}, v{T[1]}")
    A(f"s_and_b32 s{S_T0}, s{S_WV}, 1"); A(f"s_lshl_b32 s{S_T0}, s{S_T0}, 2")
    A(f"v_xor_b32 v{T[2]}, s{S_T0}, v{T[2]}")
    A(f"s_mul_i32 s{S_T0}, s{S_R}, 160"); A(f"s_mul_i32 s{S_T1}, s{S_WV}, 40"); A(f"s_add_u32 s{S_T0}, s{S_T0}, s{S_T1}")
    A(f"v_add_u32 v{T[3]}, s{S_T0}, v{T[0]}")
    A(f"v_mul_u32_u24 v{T[3]}, 896, v{T[3]}")
    A(f"v_lshl_add_u32 v{VX[0]}, v{T[2]}, 4, v{T[3]}")
    A(f"v_xor_b32 v{T[4]}, 64, v{VX[0]}")
    A(f"v_add_u32 v{VX[1]}, {7168-1024}, v{T[4]}")
    A(f"v_add_u32 v{VX[2]}, {2*(7168-1024)}, v{VX[0]}")
    A(f"v_add_u32 v{VX[3]}, {3*(7168-1024)}, v{T[4]}")
    A(f"v_add_u32 v{VX[4]}, {4*7168}, v{VX[0]}")
    A(f"v_and_b32 v{T[2]}, 15, v0")
    A(f"v_lshlrev_b32 v{T[4]}, 2, v{T[1]}")
    A(f"v_xor_b32 v{T[2]}, v{T[2]}, v{T[4]}")
    A(f"s_lshl_b32 s{S_T0}, s{S_WV}, 2")
    A(f"v_add_u32 v{T[3]}, s{S_T0}, v{T[1]}")
    A(f"v_mul_u32_u24 v{T[3]}, 3584, v{T[3]}")
    A(f"v_lshl_add_u32 v{VW[0]}, v{T[2]}, 4, v{T[3]}")
    A(f"s_lshl_b32 s{S_T0}, s{S_C}, 8")
    A(f"v_add_u32 v{VW[0]}, s{S_T0}, v{VW[0]}")
    for i in range(1, 4): A(f"v_add_u32 v{VW[i]}, {i*16*3584-(i&1)*2048}, v{VW[0]}")
    A(f"s_mul_i32 s{S_MX}, s{S_WV}, 5120")
    A(f"s_lshl_b32 s{S_MW}, s{S_WV}, 13")
    A("s_waitcnt lgkmcnt(0)")
    srd(A, R_X, P_X, 2048*896); srd(A, R_A, P_WG, 448*3584); srd(A, R_B, P_WU, 448*3584, 1024)
    def dma_stage(st):
        sb = (st % 3) * SLOT; kc = S_K7 + st; f = []
        X = lambda i, o: I(f"buffer_load_dwordx4 v{VX[i]}, {sr(R_X,4)}, s{S_SX} offen offset:{o} lds", (st, 0))
        W = lambda m, i: I(f"buffer_load_dwordx4 v{VW[i]}, {sr((R_A,R_B)[m],4)}, s{S_SW} offen offset:{(i&1)*2048+m*1024} lds", (st, i))
        f.append((f"s_add_u32 m0, s{S_MX}, {sb+XO}", f"s_lshl_b32 s{S_SX}, s{kc}, 7", X(0, 0)))
        f += [X(i, 1024 * i) for i in range(1, 4)]
        f.append((f"s_add_u32 m0, s{S_MX}, {sb+XO+4096}", f"s_mul_i32 s{S_SW}, s{kc}, {64*3584}", X(4, 0)))
        f.append((f"s_add_u32 m0, s{S_MW}, {sb+GO_}", "s_nop 0", W(0, 0)))
        f += [W(1, 0), W(0, 1), W(1, 1)]
        f.append((f"s_add_u32 m0, s{S_MW}, {sb+GO_+4096}", "s_nop 0", W(0, 2)))
        f += [W(1, 2), W(0, 3), W(1, 3)]
        return f
    pend = dma_stage(0)
    for _ in range(opt.first0): A(pend.pop(0))
    A.stamp(1)
    pf_setup(A, 240, 241, 242); A(pf_load(A, 240, 243))
    if opt.pf == 1: A(pf_load(A, 241, 244))
    for _ in range(9 - opt.first0): A(pend.pop(0))
    korder(A, range(1, 7))
    srd(A, R_D, P_WD, 1792*896); srd(A, R_O, P_WO, 448*896); srd(A, R_W, P_WS, WS_SIZE); srd(A, R_OUT, P_OUT, 2048*896)
    VXR = [[10 + 4*sl + s for s in range(4)] for sl in range(3)]
    VWR = [22, 23, 24]
    A(f"v_and_b32 v{T[2]}, 31, v0")
    A(f"v_lshrrev_b32 v{T[3]}, 5, v0")
    A(f"v_bfe_u32 v{T[4]}, v0, 1, 3")
    A(f"v_xor_b32 v{T[4]}, v{T[4]}, v{T[3]}")
    A(f"v_lshlrev_b32 v{T[4]}, 4, v{T[4]}")
    A(f"v_lshl_add_u32 v{VXR[0][0]}, v{T[2]}, 7, v{T[4]}")
    for s in range(1, 4): A(f"v_xor_b32 v{VXR[0][s]}, {32*s}, v{VXR[0][0]}")
    for sl in (1, 2):
        for s in range(4): A(f"v_add_u32 v{VXR[sl][s]}, {sl*SLOT}, v{VXR[0][s]}")
    A(f"v_bfe_u32 v{T[2]}, v0, 2, 2")
    A(f"v_lshlrev_b32 v{T[4]}, 14, v{T[3]}")
    A(f"v_lshl_add_u32 v{T[4]}, v{T[2]}, 8, v{T[4]}")
    A(f"v_xor_b32 v{T[5]}, s{S_WV}, v{T[2]}")
    A(f"v_lshl_add_u32 v{T[4]}, v{T[5]}, 6, v{T[4]}")
    A(f"v_bfe_u32 v{T[5]}, v0, 4, 1")
    A(f"v_lshl_add_u32 v{T[4]}, v{T[5]}, 5, v{T[4]}")
    A(f"v_and_b32 v{T[5]}, 3, v0")
    A(f"v_lshl_add_u32 v{T[4]}, v{T[5]}, 3, v{T[4]}")
    for sl in range(3): A(f"v_add_u32 v{VWR[sl]}, {sl*SLOT+GO_}, v{T[4]}")
    VB = [25, 26, 27, 28]
    VBR = [[29, 30, 31, 32], [33, 34, 35, 36]]
    VA2 = [46, 47, 48, 49, 50]
    VST = 51; VGO = 52; VZ = 53; VFH = 54; VFT = 55; VOM = [56, 57, 58, 59, 60]; VFO = 61; VONE = 62; VGA = 63
    VOA = 37; VOUT = 38
    S_FL = S_J
    late = []
    L = late.append
    L(f"v_and_b32 v{T[2]}, 7, v0")
    L(f"v_lshlrev_b32 v{T[4]}, 1, v{T[1]}")
    L(f"v_xor_b32 v{T[2]}, v{T[2]}, v{T[4]}")
    L(f"v_mul_u32_u24 v{T[4]}, 896, v{T[0]}")
    L(f"v_lshl_add_u32 v{VB[0]}, v{T[2]}, 4, v{T[4]}")
    L(f"s_lshl_b32 s{S_T0}, s{S_CT}, 7")
    L(f"v_add_u32 v{VB[0]}, s{S_T0}, v{VB[0]}")
    for i in range(1, 4): L(f"v_add_u32 v{VB[i]}, {i*(7168-1024)}, v{VB[0]}")
    L(f"s_mul_i32 s{S_MB}, s{S_WV}, 12288")
    L(f"v_bfe_u32 v{T[2]}, v0, 2, 3")
    L(f"v_lshl_add_u32 v{T[4]}, v{T[3]}, 4, v{T[2]}")
    L(f"v_lshlrev_b32 v{T[4]}, 7, v{T[4]}")
    L(f"v_lshrrev_b32 v{T[2]}, 1, v{T[2]}")
    L(f"v_xor_b32 v{T[2]}, s{S_WV}, v{T[2]}")
    L(f"v_lshl_add_u32 v{T[4]}, v{T[2]}, 5, v{T[4]}")
    L(f"v_lshl_add_u32 v{T[4]}, v{T[5]}, 3, v{T[4]}")
    for u in range(4):
        L(f"v_xor_b32 v{VBR[0][u]}, {32*u}, v{T[4]}")
        L(f"v_add_u32 v{VBR[0][u]}, s{S_MB}, v{VBR[0][u]}")
        L(f"v_add_u32 v{VBR[1][u]}, {2*SLOT}, v{VBR[0][u]}")
    L(f"s_lshl_b32 s{S_T0}, s{S_R}, 1"); L(f"s_add_u32 s{S_T0}, s{S_T0}, s{S_HALF}"); L(f"s_mul_i32 s{S_T1}, s{S_T0}, {5*TB}")
    L(f"v_lshlrev_b32 v{VA2[0]}, 4, v0"); L(f"v_add_u32 v{VA2[0]}, s{S_T1}, v{VA2[0]}")
    for i in range(1, 5): L(f"v_add_u32 v{VA2[i]}, {i*TB}, v{VA2[0]}")
    L(f"s_mul_i32 s{S_T0}, s{S_T0}, 80")
    L(f"s_lshr_b32 s{S_T1}, s{S_T0}, 6")
    L(f"v_and_b32 v{T[2]}, 1, v0"); L(f"v_add_u32 v{T[2]}, s{S_T1}, v{T[2]}"); L(f"v_min_u32 v{T[2]}, 31, v{T[2]}")
    L(f"v_bfe_u32 v{T[4]}, v0, 1, 1"); L(f"s_lshl_b32 s{S_T1}, s{S_WV}, 1"); L(f"v_add_u32 v{T[4]}, s{S_T1}, v{T[4]}")
    L(f"v_lshl_add_u32 v{T[2]}, v{T[4]}, 5, v{T[2]}"); L(f"v_lshlrev_b32 v{T[2]}, 7, v{T[2]}")
    L(f"v_add_u32 v{VFO}, {WS_FLAG+FO*128}, v{T[2]}")
    L(f"v_and_b32 v{T[2]}, 15, v0"); L(f"v_add_u32 v{T[2]}, s{S_T0}, v{T[2]}")
    L(f"v_mul_u32_u24 v{VOUT}, 896, v{T[2]}")
    L(f"v_lshlrev_b32 v{T[2]}, 2, v{T[2]}")
    L(f"s_lshl_b32 s{S_T1}, s{S_WV}, 15"); L(f"s_add_u32 s{S_T1}, s{S_T1}, {WS_OMG}")
    L(f"v_add_u32 v{VOA}, s{S_T1}, v{T[2]}")
    L(f"v_lshl_add_u32 v{VOUT}, v{T[1]}, 3, v{VOUT}")
    L(f"s_lshl_b32 s{S_T0}, s{S_CT}, 7"); L(f"s_lshl_b32 s{S_T1}, s{S_WV}, 5"); L(f"s_add_u32 s{S_T0}, s{S_T0}, s{S_T1}")
    L(f"v_add_u32 v{VOUT}, s{S_T0}, v{VOUT}")
    L(f"v_bfe_u32 v{T[2]}, v0, 4, 1"); L(f"v_mul_u32_u24 v{T[2]}, {TB}, v{T[2]}")
    L(f"v_and_b32 v{T[4]}, 15, v0"); L(f"v_lshl_add_u32 v{T[4]}, v{T[3]}, 4, v{T[4]}")
    L(f"v_lshl_add_u32 v{VST}, v{T[4]}, 4, v{T[2]}")
    L(f"s_lshl_b32 s{S_T1}, s{S_C}, 2"); L(f"s_add_u32 s{S_T1}, s{S_T1}, s{S_WV}")
    L(f"s_mul_i32 s{S_T0}, s{S_R}, 720"); L(f"s_add_u32 s{S_T0}, s{S_T0}, s{S_T1}"); L(f"s_lshl_b32 s{S_T0}, s{S_T0}, 10")
    L(f"v_add_u32 v{VST}, s{S_T0}, v{VST}")
    L(f"s_mul_i32 s{S_T0}, s{S_R}, 56"); L(f"s_add_u32 s{S_FL}, s{S_T0}, s{S_T1}"); L(f"s_lshl_b32 s{S_FL}, s{S_FL}, 7"); L(f"s_add_u32 s{S_FL}, s{S_FL}, {WS_FLAG+FH*128}")
    L(f"s_add_u32 s{S_T0}, s{S_T0}, s{S_WV}"); L(f"s_lshl_b32 s{S_T0}, s{S_T0}, 7"); L(f"s_add_u32 s{S_T0}, s{S_T0}, {WS_FLAG+FH*128}")
    L(f"v_min_u32 v{T[2]}, 13, v0"); L(f"v_lshlrev_b32 v{T[2]}, 9, v{T[2]}"); L(f"v_add_u32 v{VFH}, s{S_T0}, v{T[2]}")
    L(f"v_mov_b32 v{VZ}, 0"); L(f"v_mov_b32 v{VONE}, 1")
    L(f"v_and_b32 v{VGA}, 7, v0"); L(f"v_lshlrev_b32 v{VGA}, 2, v{VGA}")
    L(f"s_lshl_b32 s{S_T0}, s{S_CT}, 1"); L(f"s_add_u32 s{S_C2}, s{S_C2}, s{S_T0}")
    L((f"s_cmp_ge_u32 s{S_C2}, 14", f"s_cselect_b32 s{S_T0}, 14, 0")); L(f"s_sub_u32 s{S_C2}, s{S_C2}, s{S_T0}")
    if opt.norot2: L(f"s_mov_b32 s{S_C2}, 0")
    L(f"s_mov_b32 s{S_BC}, s{S_C2}")
    A.flush(late)

    REG_ORDER = [1, 2, 0]
    def unit(j):
        jj = j % 9
        return REG_ORDER[jj // 3], jj % 3
    def dma_b2(j):
        rg, ix = unit(j)
        f = []
        if j < 14:
            f.append((f"s_lshl_b32 s{S_SW}, s{S_BC}, 2", f"s_add_u32 s{S_SW}, s{S_SW}, s{S_WV}", f"s_mul_i32 s{S_SW}, s{S_SW}, {32*896}"))
            f.append((f"s_add_u32 m0, s{S_MB}, {rg*SLOT+ix*4096}", f"s_add_u32 s{S_BC}, s{S_BC}, 1"))
            f.append((f"s_cmp_eq_u32 s{S_BC}, 14", f"s_cselect_b32 s{S_BC}, 0, s{S_BC}"))
            R = R_D
        else:
            f.append((f"s_mul_i32 s{S_SW}, s{S_WV}, {4*28*896}", f"s_add_u32 m0, s{S_MB}, {rg*SLOT+ix*4096}", f"s_add_u32 s{S_SW}, s{S_SW}, {(j-14)*28*896}"))
            R = R_O
        for i in range(4): f.append(I(f"buffer_load_dwordx4 v{VB[i]}, {sr(R,4)}, s{S_SW} offen offset:{1024*i} lds", ("b2", j)))
        return f
    def rd_b2(j, dst):
        rg, ix = unit(j)
        st = 1 if rg == 2 else 0
        off = (0 if rg == 2 else rg * SLOT) + ix * 4096
        return [I(f"ds_read_b64_tr_b16 {ar(dst+4*u+2*rd,2)}, v{VBR[st][u]} offset:{off+rd*1024}", ("wb", j)) for u in range(4) for rd in range(2)]

    ACC = lambda b, mat: 64 + (b * 2 + mat) * 16
    FR = [0, 28]
    def rdw(st, s, mat, dst, tag):
        return [I(f"ds_read_b64_tr_b16 {ar(dst+2*rd,2)}, v{VWR[st%3]} offset:{rd*8192+s*2048+mat*1024}", tag) for rd in range(2)]
    def rdx(st, s, b, dst, tag):
        return I(f"ds_read_b128 {ar(dst,4)}, v{VXR[st%3][s]} offset:{b*4096}", tag)
    def reads(st, s, buf):
        o = FR[buf]; tg = ("f", st, s)
        x = [rdx(st, s, b, o + 4 * b, tg) for b in range(5)]
        return rdw(st, s, 0, o + 20, tg) + [x[0]] + rdw(st, s, 1, o + 24, tg) + x[1:]
    def mfmas(first, buf):
        o = FR[buf]; r = []
        for b in range(5):
            for mat in range(2):
                d = vr(ACC(b, mat), 16)
                r.append(f"v_mfma_f32_32x32x16_bf16 {d}, {ar(o+20+4*mat,4)}, {ar(o+4*b,4)}, {'0' if first else d}")
        return r
    pend += (pf_load(A, 241, 244) if opt.pf == 2 else []) + dma_stage(1) + (pf_load(A, 241, 244) if opt.pf == 3 else []) + dma_stage(2)
    for _ in range(opt.pre0): A(pend.pop(0))
    A.wait(vm=[(0, 0)])
    A("s_barrier")
    A.stamp(2); A.stamp(1, 1)
    A(reads(0, 0, 0))
    def need_issued(tagset):
        def has(f):
            if isinstance(f, (tuple, list)): return any(has(x) for x in f)
            return isinstance(f, I) and f.tag in tagset
        while any(has(f) for f in pend): A(pend.pop(0))
    ks = 0
    NST = 6 if opt.blockmajor else 7
    W6 = 200
    XB = [0, 28]
    for st in range(NST):
        for s in range(4):
            buf = ks & 1
            if s == 3:
                tg = [(st + 1, i) for i in range(4)]
                need_issued(tg)
                A.wait(vm=tg, lg="all")
                A("s_barrier")
                A.stamp(st + 2, 1)
                if st + 3 < 7:
                    pend += dma_stage(st + 3)
                    if st == 3: pend.append(I(f"global_load_dword v{VGO}, v{VGA}, {sr(P_DBG,2)} sc1", "go"))
                elif st < 6:
                    pend += sum((dma_b2(3 * (st - 4) + i) for i in range(3)), [])
            elif st == 0:
                need_issued([(0, s + 1)])
                A.wait(vm=[(0, s + 1)], lg="all")
                A("s_barrier")
            else:
                A.wait(lg="all")
            if s < 3: nxt = reads(st, s + 1, buf ^ 1)
            elif st + 1 < NST: nxt = reads(st + 1, 0, buf ^ 1)
            elif opt.blockmajor:
                assert buf == 1
                nxt = []
                for s2 in range(4):
                    nxt += rdw(6, s2, 0, W6 + 8 * s2, ("w6", s2)) + [rdx(6, s2, 0, XB[0] + 4 * s2, ("w6", s2))] + rdw(6, s2, 1, W6 + 8 * s2 + 4, ("w6", s2))
            else: nxt = []
            mf = mfmas(ks == 0, buf)
            nd = opt.rate0 if st < 2 else 5
            dm = pend[:nd]; del pend[:nd]
            A.weave(mf, (nxt, 2), (dm, 1, 10 - min(10, nd)))
            A.flush(nxt); A.flush(dm)
            ks += 1
    TP = 224
    def epi(b):
        g, u = ACC(b, 0), ACC(b, 1)
        t = TP + 8 * (b & 1); f = []
        for jj in range(2):
            for i in range(8 * jj, 8 * jj + 8): f.append(f"v_max_f32 v{g+i}, 0, v{g+i}")
            for i in range(8 * jj, 8 * jj + 8): f.append(f"v_mul_f32 v{g+i}, v{g+i}, v{u+i}")
            for i in range(4 * jj, 4 * jj + 4): f.append(f"v_cvt_pk_bf16_f32 v{t+i}, v{g+2*i}, v{g+2*i+1}")
            if jj == 0: f.append(f"s_mov_b32 s{S_T0}, {2*b*TB}")
            f.append(I(f"buffer_store_dwordx4 {vr(t+4*jj,4)}, v{VST}, {sr(R_W,4)}, s{S_T0} offen offset:{512*jj} sc1", "hst"))
        return f
    HO = 56
    if opt.blockmajor:
        ep = []
        for b in range(5):
            xb = XB[b & 1]
            nxt = [rdx(6, s2, b + 1, XB[(b + 1) & 1] + 4 * s2, ("x6", b + 1)) for s2 in range(4)] if b < 4 else []
            if b > 0: A.wait(lg=[("x6", b)])
            if b == 4: A("s_barrier")
            for s2 in range(4):
                if b == 0: A.wait(lg=[("w6", s2)])
                mf = [f"v_mfma_f32_32x32x16_bf16 {vr(ACC(b,m),16)}, {ar(W6+8*s2+4*m,4)}, {ar(xb+4*s2,4)}, {vr(ACC(b,m),16)}" for m in range(2)]
                if b == 0: A.weave(mf, (nxt, 1), (pend, 2))
                elif s2 == 0: A.weave(mf, (nxt, 2), (ep, 3))
                else:
                    if s2 == 1:
                        A.flush(ep); ep = epi(b - 1)
                        A.weave(mf[:1], (pend, 3)); A.weave(mf[1:], (ep, 6))
                    else: A.weave(mf, (ep, 6))
        A.stamp(3)
        A.nop(max(0, 12 - len(ep)))
        A.flush(ep)
        A.flush(pend)
        A(epi(4))
    else:
        A.stamp(3)
        A.flush(pend)
        A.nop(12)
        for b in range(5): A(epi(b))
    for j in range(6, 9): A(dma_b2(j))
    A.wait(vm=[("b2", 2)])
    for j in range(3): A(rd_b2(j, HO + 16 * j))
    A.wait(vm=[("b2", 5)])
    for j in range(3, 6): A(rd_b2(j, HO + 16 * j))
    check(A, VGA, VGO, "go", dbg=True)
    A.wait(vm=["hst"])
    A.stamp(4)
    set_flag(A, S_FL, VZ, VONE)
    A.wait(lg="all")
    nb = opt.b2pre
    for j in range(9, min(15, nb)): A(dma_b2(j))
    A.wait(vm=[("b2", 8)])
    for j in range(6, 9): A(rd_b2(j, HO + 16 * j))
    A.wait(lg="all")
    for j in range(15, nb): A(dma_b2(j))
    A(poll_load(VFH, VFT, "fh"))
    check(A, VFH, VFT, "fh")
    A.stamp(5)
    b2left = sum((dma_b2(j) for j in range(nb, 18)), [])
    RING = [("v", 144 + 20 * i) for i in range(5)] + [("a", 0), ("a", 20), ("a", 232)]
    NR = opt.ring
    def a2reg(j, blk):
        k, b = RING[j % NR]
        return vr(b + 4 * blk, 4) if k == "v" else ar(b + 4 * blk, 4)
    def ld_a2(j):
        f = []
        if j < 14:
            f.append((f"s_lshl_b32 s{S_SX}, s{S_C2}, 2", f"s_add_u32 s{S_SX}, s{S_SX}, s{S_WV}", f"s_lshl_b32 s{S_SX}, s{S_SX}, 10"))
            f.append((f"s_add_u32 s{S_C2}, s{S_C2}, 1", f"s_cmp_eq_u32 s{S_C2}, 14", f"s_cselect_b32 s{S_C2}, 0, s{S_C2}"))
        else:
            f.append((f"s_lshl_b32 s{S_SX}, s{S_WV}, 12", f"s_add_u32 s{S_SX}, s{S_SX}, {(56+j-14)*1024}"))
        for blk in range(5):
            f.append(I(f"buffer_load_dwordx4 {a2reg(j, blk)}, v{VA2[blk]}, {sr(R_W,4)}, s{S_SX} offen sc1", ("a2", j)))
        return f
    ACC2 = lambda u, blk: 64 + (u * 5 + blk) * 4
    WB = [200, 216]
    def wreg(j, u): return ar((HO + 16 * j if j < 9 else WB[j & 1]) + 4 * u, 4)
    def mf2(j):
        r = []
        for blk in range(5):
            for u in range(4):
                d = vr(ACC2(u, blk), 4)
                r.append(f"v_mfma_f32_16x16x32_bf16 {d}, {wreg(j,u)}, {a2reg(j,blk)}, {'0' if j == 0 else d}")
        return r
    LA = NR - 1
    for j in range(opt.p2pre): A(ld_a2(j))
    issued = opt.p2pre
    JCHK = 14 - LA
    for j in range(18):
        fill = []
        A.wait(vm=[("a2", j), ("b2", j + 1)] + (["om"] if j == 14 else []), lg=[("wb", j)])
        if j == JCHK:
            check(A, VFO, VFT, "fo")
            A.stamp(6)
            fill += [I(f"buffer_load_dword v{VOM[blk]}, v{VOA}, {sr(R_W,4)}, 0 offen offset:{64*blk} sc1", "om") for blk in range(5)]
        if j == 14:
            A.nop(8)
            for u in range(4):
                for blk in range(5):
                    for i in range(4): A(f"v_mul_f32 v{ACC2(u,blk)+i}, v{VOM[blk]}, v{ACC2(u,blk)+i}")
            A.nop(2)
        n = 0
        while issued < min(18, j + LA + 1) and n < 2:
            if issued == JCHK + 1: fill.append(poll_load(VFO, VFT, "fo"))
            fill += ld_a2(issued); issued += 1; n += 1
        if j >= 2:
            fill += b2left[:7]; del b2left[:7]
        rd = rd_b2(j + 1, WB[(j + 1) & 1]) if 9 <= j + 1 < 18 else []
        A.weave(mf2(j), (fill, 1), (rd, 1, 8))
        A.flush(fill); A.flush(rd)
    assert not b2left
    A.stamp(7)
    VRW = 1; VRR = [2, 3, 4]
    A(f"v_lshlrev_b32 v{VRW}, 4, v0")
    for u in range(1, 4):
        A(f"s_xor_b32 s{S_T1}, s{S_WV}, {u}"); A(f"s_mul_i32 s{S_T1}, s{S_T1}, 12288")
        A(f"v_add_u32 v{VRR[u-1]}, s{S_T1}, v{VRW}")
    A(f"v_add_u32 v{VRW}, s{S_MB}, v{VRW}")
    def roff(u, blk):
        i = (u - 1) * 5 + blk
        return i * 1024 if i < 10 else SLOT + (i - 10) * 1024
    for blk in range(5):
        for u in range(1, 4): A(f"ds_write_b128 v{VRW}, {vr(ACC2(u,blk),4)} offset:{roff(u,blk)}")
    A.wait(lg="all")
    A("s_barrier")
    for blk in range(5):
        for u in range(1, 4): A(I(f"ds_read_b128 {vr(ACC2(u,blk),4)}, v{VRR[u-1]} offset:{roff(u,blk)}", ("r", blk)))
    for blk in range(5):
        A.wait(lg=[("r", blk)])
        a0, a1, a2, a3 = (ACC2(u, blk) for u in range(4))
        for i in range(4): A(f"v_add_f32 v{a0+i}, v{a0+i}, v{a1+i}")
        for i in range(4): A(f"v_add_f32 v{a2+i}, v{a2+i}, v{a3+i}")
        for i in range(4): A(f"v_add_f32 v{a0+i}, v{a0+i}, v{a2+i}")
        A(f"v_cvt_pk_bf16_f32 v{a0}, v{a0}, v{a0+1}"); A(f"v_cvt_pk_bf16_f32 v{a0+1}, v{a0+2}, v{a0+3}")
        A(f"s_mov_b32 s{S_T0}, {16*896*blk}")
        A(f"buffer_store_dwordx2 {vr(a0,2)}, v{VOUT}, {sr(R_OUT,4)}, s{S_T0} offen {opt.outpol}")
    if opt.stamps:
        A("s_waitcnt vmcnt(0)"); A.stamp(8); write_stamps(A); diag_pad(A, "F")
    A("s_endpgm")

ASLOT = 49152; AW = 32768
import struct
NEPSL = struct.unpack("<I", struct.pack("<f", -1e-6 * 1.4426950408889634))[0]
VL2E, VEPS1 = 42, 43
def phi_list(r, n, t, pk):
    f = []
    for g in range(0, n, 4):
        for i in range(4): f.append(f"v_fmaak_f32 v{t+i}, v{r+g+i}, v{VL2E}, {NEPSL:#x}")
        for i in range(4): f.append(f"v_exp_f32_e64 v{t+i}, v{t+i} clamp")
        for i in range(4): f.append(f"v_max_f32 v{r+g+i}, v{VEPS1}, v{r+g+i}")
        for i in range(4): f.append(f"v_add_f32 v{r+g+i}, v{r+g+i}, v{t+i}")
        for i in range(2): f.append(f"v_cvt_pk_bf16_f32 v{pk+g//2+i}, v{r+g+2*i}, v{r+g+2*i+1}")
    return f

def att(A):
    opt = A.opt
    A.vm = []; A.lg = []
    A.label("L_att")
    A(f"s_sub_u32 s{S_T0}, s{S_T0}, 3")
    A(f"s_lshr_b32 s{S_T2}, s{S_T0}, 2")
    A(f"s_lshl_b32 s{S_RT}, s{S_T1}, 1"); A(f"s_add_u32 s{S_RT}, s{S_RT}, s{S_T2}")
    A(f"s_and_b32 s{S_T0}, s{S_T0}, 3")
    A(f"s_lshl_b32 s{S_HP}, s{S_HALF}, 2"); A(f"s_add_u32 s{S_HP}, s{S_HP}, s{S_T0}")
    if opt.rotd == 7:
        A(f"s_mul_i32 s{S_J}, s{S_T2}, 3"); A(f"s_lshl_b32 s{S_T0}, s{S_T0}, 1"); A(f"s_add_u32 s{S_J}, s{S_J}, s{S_T0}")
    else:
        A(f"s_add_u32 s{S_J}, s{S_T2}, s{S_T0}")
    korder(A, [0])
    VX = [1, 2, 3, 4]; VW = [5, 6, 30, 31]
    T = [24, 25, 26, 27, 28, 29]
    S_TB = S_C
    S_SX2 = S_C2; S_WSEC = S_BC; S_MQ = S_MB
    A(f"v_lshrrev_b32 v{T[0]}, 3, v0"); A(f"v_lshrrev_b32 v{T[1]}, 4, v0")
    A(f"v_and_b32 v{T[2]}, 7, v0"); A(f"v_xor_b32 v{T[3]}, v{T[2]}, v{T[1]}")
    A(f"s_lshl_b32 s{S_TB}, s{S_RT}, 2"); A(f"s_add_u32 s{S_TB}, s{S_TB}, s{S_WV}"); A(f"s_lshl_b32 s{S_T0}, s{S_TB}, 6")
    A(f"v_add_u32 v{T[4]}, s{S_T0}, v{T[0]}"); A(f"v_mul_u32_u24 v{T[4]}, 896, v{T[4]}")
    A(f"v_lshl_add_u32 v{VX[0]}, v{T[3]}, 4, v{T[4]}")
    A(f"v_xor_b32 v{T[4]}, 64, v{VX[0]}")
    A(f"v_add_u32 v{VX[1]}, {6144}, v{T[4]}"); A(f"v_add_u32 v{VX[2]}, {2*6144}, v{VX[0]}"); A(f"v_add_u32 v{VX[3]}, {3*6144}, v{T[4]}")
    A(f"v_and_b32 v{T[3]}, 1, v{T[1]}"); A(f"v_lshlrev_b32 v{T[3]}, 2, v{T[3]}"); A(f"v_xor_b32 v{T[3]}, v{T[3]}, v{T[2]}")
    A(f"v_cmp_ne_u32 {sr(S_MASK,2)}, 7, v{T[3]}")
    A(f"v_min_u32 v{T[3]}, 6, v{T[3]}")
    A(f"s_and_b32 s{S_T1}, s{S_WV}, 1"); A(f"s_lshl_b32 s{S_T0}, s{S_T1}, 3")
    A(f"v_add_u32 v{T[4]}, s{S_T0}, v{T[0]}"); A(f"v_mul_u32_u24 v{T[4]}, 2688, v{T[4]}")
    A(f"v_lshl_add_u32 v{VW[0]}, v{T[3]}, 4, v{T[4]}")
    A(f"s_mul_i32 s{S_T0}, s{S_HP}, 112"); A(f"v_add_u32 v{VW[0]}, s{S_T0}, v{VW[0]}")
    for i in range(1, 4): A(f"v_add_u32 v{VW[i]}, {i*(16*2688-1024)}, v{VW[0]}")
    A(f"s_lshl_b32 s{S_MX}, s{S_WV}, 13"); A(f"s_lshl_b32 s{S_MW}, s{S_WV}, 12")
    A(f"s_lshr_b32 s{S_T2}, s{S_WV}, 1"); A(f"s_mul_i32 s{S_WSEC}, s{S_T2}, 896"); A(f"s_add_u32 s{S_WSEC}, s{S_WSEC}, 896")
    A(f"s_lshl_b32 s{S_MQ}, s{S_T1}, 12"); A(f"s_lshl_b32 s{S_T2}, s{S_T2}, 11"); A(f"s_add_u32 s{S_MQ}, s{S_MQ}, s{S_T2}")
    A("s_waitcnt lgkmcnt(0)")
    srd(A, R_X, P_X, 2048*896); srd(A, R_A, P_QKV, 448*2688)
    def dma_stage(st):
        sb = (st % 3) * ASLOT; kc = S_K7 + st; f = []
        X = lambda i, s: I(f"buffer_load_dwordx4 v{VX[i]}, {sr(R_X,4)}, s{s} offen offset:{1024*i} lds", (st, 0))
        W = lambda i: I(f"buffer_load_dwordx4 v{VW[i]}, {sr(R_A,4)}, s{S_SW} offen offset:{1024*i} lds", (st, i))
        f.append((f"s_add_u32 m0, s{S_MX}, {sb}", f"s_lshl_b32 s{S_SX}, s{kc}, 7", X(0, S_SX)))
        f += [X(i, S_SX) for i in range(1, 4)]
        f.append((f"s_add_u32 m0, s{S_MX}, {sb+4096}", f"s_add_u32 s{S_SX2}, s{S_SX}, {32*896}", X(0, S_SX2)))
        f += [X(i, S_SX2) for i in range(1, 3)]
        f.append((f"s_mul_i32 s{S_SW}, s{kc}, {64*2688}", X(3, S_SX2)))
        f.append((f"s_add_u32 m0, s{S_MW}, {sb+AW}", f"s_add_u32 s{S_SW}, s{S_SW}, s{S_WSEC}", W(0)))
        f += [W(i) for i in range(1, 4)]
        return f
    def qloc(ch):
        return ASLOT + ch * 8192 if ch < 4 else 2 * ASLOT + (ch - 4) * 8192
    S_QR = S_XO
    def dma_q(ch):
        return [(f"s_mul_i32 s{S_SW}, s{S_K7+ch}, {64*2688}", f"s_add_u32 m0, s{S_MQ}, {qloc(ch)}", f"s_add_u32 s{S_SW}, s{S_SW}, s{S_QR}"),
                (f"s_mov_b64 exec, {sr(S_MASK,2)}",
                 I(f"buffer_load_dwordx4 v{VW[0]}, {sr(R_A,4)}, s{S_SW} offen lds", "q"),
                 I(f"buffer_load_dwordx4 v{VW[1]}, {sr(R_A,4)}, s{S_SW} offen offset:1024 lds", "q"),
                 "s_mov_b64 exec, -1")]
    pend = dma_stage(0)
    for _ in range(9): A(pend.pop(0))
    A.stamp(1)
    pf_setup(A, 60, 61, 62); A(pf_load(A, 60, 62))
    if opt.pf == 1: A(pf_load(A, 61, 63))
    korder(A, range(1, 7))
    A(f"s_lshr_b32 s{S_QR}, s{S_WV}, 1"); A(f"s_mul_i32 s{S_QR}, s{S_QR}, {32*2688}")
    srd(A, R_W, P_WS, WS_SIZE)
    VG = [32, 34]
    A(f"s_cmp_eq_u32 s{S_WV}, 1"); A(f"s_cselect_b32 s{S_T0}, s{S_K7+1}, s{S_K7}"); A(f"s_cselect_b32 s{S_T1}, s{S_K7+5}, s{S_K7+4}")
    A(f"s_cmp_ge_u32 s{S_WV}, 2"); A(f"s_cselect_b32 s{S_T0}, s{S_K7+2}, s{S_T0}"); A(f"s_cselect_b32 s{S_T1}, s{S_K7+6}, s{S_T1}")
    A(f"s_cmp_eq_u32 s{S_WV}, 3"); A(f"s_cselect_b32 s{S_T0}, s{S_K7+3}, s{S_T0}")
    A(f"s_lshl_b32 s{S_T0}, s{S_T0}, 7"); A(f"s_lshl_b32 s{S_T1}, s{S_T1}, 7")
    A(f"v_lshlrev_b32 v{T[5]}, 1, v0")
    A(f"v_add_u32 v36, s{S_T0}, v{T[5]}"); A(f"v_add_u32 v37, s{S_T1}, v{T[5]}")
    A(f"v_mov_b32 v{VG[0]+1}, 0"); A(f"v_mov_b32 v{VG[1]+1}, 0")
    gwl = [I(f"global_load_ushort v{VG[0]}, v36, {sr(P_GW,2)}", "gw"), I(f"global_load_ushort v{VG[1]}, v37, {sr(P_GW,2)}", "gw")]
    VXR = [7, 8, 9, 10]; VXR2 = [11, 12, 13, 14]
    VWR = [[15, 16], [17, 18]]
    A(f"v_and_b32 v{T[2]}, 31, v0"); A(f"v_lshrrev_b32 v{T[3]}, 5, v0")
    A(f"v_bfe_u32 v{T[4]}, v0, 1, 3"); A(f"v_xor_b32 v{T[4]}, v{T[4]}, v{T[3]}"); A(f"v_lshlrev_b32 v{T[4]}, 4, v{T[4]}")
    A(f"v_lshl_add_u32 v{T[4]}, v{T[2]}, 7, v{T[4]}")
    for s in range(4):
        A(f"v_xor_b32 v{VXR[s]}, {32*s}, v{T[4]}"); A(f"v_add_u32 v{VXR[s]}, s{S_MX}, v{VXR[s]}")
        A(f"v_add_u32 v{VXR2[s]}, {2*ASLOT}, v{VXR[s]}")
    A(f"v_bfe_u32 v{T[2]}, v0, 2, 2")
    A(f"v_lshlrev_b32 v{T[4]}, 12, v{T[3]}"); A(f"v_lshl_add_u32 v{T[4]}, v{T[2]}, 7, v{T[4]}")
    A(f"v_and_b32 v{T[2]}, 2, v{T[2]}"); A(f"v_lshlrev_b32 v{T[2]}, 5, v{T[2]}")
    A(f"v_bfe_u32 v{T[5]}, v0, 4, 1"); A(f"v_lshlrev_b32 v{T[5]}, 2, v{T[5]}")
    A(f"v_and_b32 v{T[0]}, 3, v0"); A(f"v_add_u32 v{T[5]}, v{T[5]}, v{T[0]}"); A(f"v_lshlrev_b32 v{T[5]}, 3, v{T[5]}")
    WB0, WB1 = 32768, 32768 + 65536
    for hh in range(2):
        A(f"v_add_u32 v{T[0]}, {56*hh}, v{T[5]}"); A(f"v_xor_b32 v{T[0]}, v{T[0]}, v{T[2]}"); A(f"v_add_u32 v{T[0]}, v{T[0]}, v{T[4]}")
        A(f"v_add_u32 v{VWR[0][hh]}, {WB0}, v{T[0]}"); A(f"v_add_u32 v{VWR[1][hh]}, {WB1}, v{T[0]}")
    def wtr(dst, hh, base, s, tag):
        r = []
        for rd in range(2):
            addr = base + s * 1024 + rd * 512
            st = 0 if addr < WB1 else 1
            off = addr - (WB0, WB1)[st]
            assert 0 <= off < 65536
            r.append(I(f"ds_read_b64_tr_b16 {ar(dst+2*rd,2)}, v{VWR[st][hh]} offset:{off}", tag))
        return r
    VGW = 19; VGO = 22; VZ = 23; VGA = 20; VONE = 21; VFL = 38; VFT = 39; VL16 = 40; VOST = 41
    A(f"v_and_b32 v{T[0]}, 2, v0"); A(f"v_lshlrev_b32 v{T[0]}, 5, v{T[0]}"); A(f"v_xor_b32 v{T[0]}, 112, v{T[0]}")
    A(f"v_and_b32 v{T[2]}, 7, v0"); A(f"v_lshl_add_u32 v{T[0]}, v{T[2]}, 7, v{T[0]}")
    A(f"v_lshl_add_u32 v{T[0]}, v{T[1]}, 10, v{T[0]}")
    A(f"v_bfe_u32 v{T[4]}, v0, 3, 1"); A(f"v_lshl_add_u32 v{T[0]}, v{T[4]}, 12, v{T[0]}")
    A(f"v_add_u32 v{T[0]}, s{S_MX}, v{T[0]}"); A(f"v_add_u32 v{VGW}, {ASLOT}, v{T[0]}")
    A(f"v_mov_b32 v{VZ}, 0"); A(f"v_mov_b32 v{VONE}, 1"); A(f"v_lshlrev_b32 v{VGA}, 2, v{T[2]}")
    A(f"v_lshlrev_b32 v{VL16}, 4, v0")
    A(f"s_lshl_b32 s{S_T0}, s{S_HP}, 5"); A(f"s_add_u32 s{S_T0}, s{S_T0}, s{S_WV}")
    A(f"s_lshl_b32 s{S_T0}, s{S_T0}, 7"); A(f"s_add_u32 s{S_T0}, s{S_T0}, {WS_FLAG+FKV*128}")
    A(f"v_lshlrev_b32 v{VFL}, 9, v{T[2]}"); A(f"v_add_u32 v{VFL}, s{S_T0}, v{VFL}")
    A(f"v_bfe_u32 v{T[0]}, v0, 4, 1"); A(f"v_mul_u32_u24 v{T[0]}, {TB}, v{T[0]}")
    A(f"v_and_b32 v{T[2]}, 15, v0"); A(f"v_lshl_add_u32 v{T[2]}, v{T[3]}, 4, v{T[2]}")
    A(f"v_lshl_add_u32 v{VOST}, v{T[2]}, 4, v{T[0]}")
    XR = lambda ks, b: (ks * 2 + b) * 4
    AK_ = lambda b, hh: 64 + (b * 2 + hh) * 16
    AV_ = lambda b, hh: 128 + (b * 2 + hh) * 16
    AQ_ = lambda b, hh: 192 + (b * 2 + hh) * 16
    PV = lambda b, hh: 224 + (b * 2 + hh) * 8
    A(f"v_mov_b32 v{VL2E}, {LOG2E:#x}"); A(f"v_mov_b32 v{VEPS1}, {EPS:#x}"); A("v_mov_b32 v224, 0x3f803f80")
    for i in range(16): A(f"v_mov_b32 v{192+i}, v{VEPS1}")
    init2 = [f"v_mov_b32 v{208+i}, v{VEPS1}" for i in range(16)] + [f"v_mov_b32 v{224+i}, v224" for i in range(1, 32)]
    def rdx(ks, tag):
        st, s = divmod(ks, 4); sl = st % 3
        xv = VXR2[s] if sl == 2 else VXR[s]; xo = 0 if sl == 2 else sl * ASLOT
        return [I(f"ds_read_b128 {ar(XR(ks,b),4)}, v{xv} offset:{xo+b*4096}", tag) for b in range(2)]
    def rdkv(ks, mat, o, tag):
        st, s = divmod(ks, 4)
        return sum((wtr(o + hh * 4, hh, (st % 3) * ASLOT + AW + mat * 8192, s, tag) for hh in range(2)), [])
    def mfkv(ks, mat, o):
        r = []
        for hh in range(2):
            for b in range(2):
                d = vr((AK_, AV_)[mat](b, hh), 16)
                r.append(f"v_mfma_f32_32x32x16_bf16 {d}, {ar(XR(ks,b),4)}, {ar(o+hh*4,4)}, {(vr(192,16), '0')[mat] if ks == 0 else d}")
        return r
    KF = opt.kfirst
    units = []
    for ks in range(4 * KF): units += [(ks, 0), (ks, 1)]
    units += [(ks, 0) for ks in range(4 * KF, 28)] + [(ks, 1) for ks in range(4 * KF, 28)]
    FB = lambda n: 224 + 8 * (n % 4)
    def ureads(n):
        if n >= len(units): return []
        ks, mat = units[n]
        w = rdkv(ks, mat, FB(n), ("u", n))
        if mat == 0:
            x = rdx(ks, ("u", n)); return [x[0]] + w[:2] + [x[1]] + w[2:]
        return w
    def need_issued(tagset):
        def has(f):
            if isinstance(f, (tuple, list)): return any(has(x) for x in f)
            return isinstance(f, I) and f.tag in tagset
        while any(has(f) for f in pend): A(pend.pop(0))
    pend += (pf_load(A, 61, 63) if opt.pf == 2 else []) + dma_stage(1) + (pf_load(A, 61, 63) if opt.pf == 3 else []) + gwl + dma_stage(2)
    for _ in range(opt.pre0): A(pend.pop(0))
    A.wait(vm=[(0, 0)])
    A("s_barrier")
    A.stamp(2); A.stamp(1, 1)
    A(ureads(0)); A(ureads(1))
    valu = init2
    NK = 4 * KF * 2 + (28 - 4 * KF)
    for n, (ks, mat) in enumerate(units):
        bar = None
        if n + 2 < len(units):
            k2, m2 = units[n + 2]
            if m2 == 0 and k2 % 4 == 0: bar = [(k2 // 4, i) for i in range(4)]
            elif m2 == 0 and k2 < 4: bar = [(0, k2)]
        if bar:
            need_issued(bar)
            A.wait(vm=bar, lg="all")
            A("s_barrier")
            st = bar[0][0] - 1 if len(bar) == 4 else None
            if st is not None:
                A.stamp(st + 2, 1)
                if st + 3 < 7:
                    pend += dma_stage(st + 3)
                    if st == 2: pend.append(I(f"global_load_dword v{VGO}, v{VGA}, {sr(P_DBG,2)} sc1", "go"))
                elif st == 4:
                    pend += [f"ds_write_b64 v{VGW}, {vr(VG[0],2)}"] + sum((dma_q(c) for c in range(4)), [])
                elif st == 5:
                    pend += [f"ds_write_b64 v{VGW}, {vr(VG[1],2)} offset:{ASLOT}"] + sum((dma_q(c) for c in range(4, 7)), [])
        else:
            A.wait(lg=[("u", n)])
        if n == NK + 1:
            for b in range(2):
                for hh in range(2): valu += phi_list(AK_(b, hh), 16, 44 + 4 * hh, AK_(b, hh))
        nxt = ureads(n + 2)
        nd = (opt.rate0 + 1) // 2 if ks < 8 else (2 if ks < 4 * KF else 3)
        dm = pend[:nd]; del pend[:nd]
        A.weave(mfkv(ks, mat, FB(n)), (nxt, 2), (dm, 1, 4 - min(4, nd)), (valu, 5))
        A.flush(nxt); A.flush(dm)
    assert KF >= 4 and not pend
    A.stamp(3)
    if KF == 7:
        A.nop(12)
        for b in range(2):
            for hh in range(2): valu += phi_list(AK_(b, hh), 16, 44 + 4 * hh, AK_(b, hh))
    A.flush(valu)
    A.wait(vm=["q"], lg="all")
    A("s_barrier")
    qt = [(0, 1), (1, 1), (0, 0), (1, 0)]
    qun = [(t, k2) for t in range(4) for k2 in range(14)]
    def qreads(n):
        if n >= len(qun): return []
        t, k2 = qun[n]; hh = qt[t][1]
        return sum((wtr(FB(n) + 4 * i, hh, qloc((2 * k2 + i) // 4), (2 * k2 + i) % 4, ("q", n)) for i in range(2)), [])
    AQT = [192, 208, 128, 144]
    def qmf(n):
        t, k2 = qun[n]; b = qt[t][0]; d = vr(AQT[t], 16)
        return [f"v_mfma_f32_32x32x16_bf16 {d}, {ar(FB(n)+4*i,4)}, {ar(XR(2*k2+i,b),4)}, {d}" for i in range(2)]
    A(qreads(0)); A(qreads(1)); A(qreads(2))
    A("s_mov_b32 exec_lo, 0xefffffff"); A("s_mov_b32 exec_hi, 0xefffffff")
    for b in range(2):
        for hh in range(2):
            for i in range(8): A(f"v_cvt_pk_bf16_f32 v{PV(b,hh)+i}, v{AV_(b,hh)+2*i}, v{AV_(b,hh)+2*i+1}")
    A("s_mov_b64 exec, -1")
    KV = [160, 176]
    A(f"v_add_u32 v{T[0]}, s{S_MX}, v{VL16}")
    A(f"s_lshl_b32 s{S_T0}, s{S_WV}, 11"); A(f"v_add_u32 v{T[1]}, s{S_T0}, v{VL16}")
    for hh in range(2):
        for b in range(2):
            for s in range(2):
                d = vr(KV[hh], 16)
                A(f"v_mfma_f32_32x32x16_bf16 {d}, {vr(AK_(b,hh)+4*s,4)}, {vr(PV(b,hh)+4*s,4)}, {'0' if (b, s) == (0, 0) else d}")
    S_KF = S_SX; S_KP = S_SW; S_O0 = S_SX2; S_O1 = S_WSEC; S_OF = S_MQ
    SP = 3 * ASLOT
    VGT = [52, 54]
    KA = 64
    ev = {}
    def at(n, *f): ev.setdefault(n, []).extend(f)
    fq = []
    at(0, f"s_lshl_b32 s{S_T0}, s{S_HP}, 5", f"s_add_u32 s{S_T0}, s{S_T0}, s{S_TB}",
       f"s_lshl_b32 s{S_KP}, s{S_T0}, 11", f"s_add_u32 s{S_KP}, s{S_KP}, {WS_KVP}",
       f"s_lshl_b32 s{S_KF}, s{S_T0}, 7", f"s_add_u32 s{S_OF}, s{S_KF}, {WS_FLAG+FO*128}", f"s_add_u32 s{S_KF}, s{S_KF}, {WS_FLAG+FKV*128}")
    at(1, *[I(f"ds_write_b128 v{T[0]}, {vr(KV[0]+4*i,4)} offset:{1024*i}", "kw") for i in range(4)])
    at(2, *[I(f"ds_write_b128 v{T[0]}, {vr(KV[0]+4*i,4)} offset:{1024*i}", "kw") for i in range(4, 8)])
    at(4, lambda: (A.wait(lg=["kw"]), A("s_barrier")),
       *[I(f"ds_read_b128 {vr(64+8*w+4*i,4)}, v{T[1]} offset:{8192*w+1024*i}", "kr") for w in range(4) for i in range(2)])
    at(7, lambda: A.wait(lg=["kr"]),
       *[f"v_add_f32 v{64+i}, v{64+i}, v{72+i}" for i in range(8)], *[f"v_add_f32 v{80+i}, v{80+i}, v{88+i}" for i in range(8)],
       *[f"v_add_f32 v{64+i}, v{64+i}, v{80+i}" for i in range(8)],
       *[I(f"buffer_store_dwordx4 {vr(64+4*i,4)}, v{VL16}, {sr(R_W,4)}, s{S_KP} offen offset:{1024*i} sc1", "ks") for i in range(2)],
       lambda: check(A, VGA, VGO, "go", dbg=True))
    def tile_post(t):
        b, hh = qt[t]; r = AQT[t]; f = []
        if hh == 1:
            g = VGT[b]
            f += [f"v_mov_b32 v{g}, v{r+12}", f"v_mov_b32 v{g+1}, v{r+12}"]
        p = phi_list(r, 16, 44, r)
        if hh == 1:
            ins = [(4, f"v_permlane32_swap_b32 v{g}, v{g+1}"), (10, f"v_fmaak_f32 v{g}, v{g+1}, v{VL2E}, {NEPSL:#x}"), (12, f"v_exp_f32_e64 v{g}, -v{g}"),
                   (16, f"v_add_f32 v{g}, 1.0, v{g}"), (18, f"v_rcp_f32 v{g+1}, v{g}"), (22, f"v_sub_f32 v{g}, 1.0, v{g+1}")]
            for pos, t_ in reversed(ins): p.insert(pos, t_)
        f += p
        f.append(("s_mov_b32 exec_lo, 0", f"v_mov_b32 v{r+6}, 0", f"v_mov_b32 v{r+7}, 0", "s_mov_b32 exec_lo, -1"))
        return f
    at(11, *[f"v_mov_b32 v{128+i}, v{VEPS1}" for i in range(32)])
    at(16, *tile_post(0)); at(30, *tile_post(1)); at(44, *tile_post(2))
    hard = {}
    def kvflag():
        A.wait(vm=["ks"]); A.stamp(4); set_flag(A, S_KF, VZ, VONE)
    hard[opt.kvflag] = kvflag
    hard[opt.kvpoll] = lambda: A(poll_load(VFL, VFT, "fk"))
    def kvgather():
        check(A, VFL, VFT, "fk"); A.stamp(5)
        A(f"s_lshl_b32 s{S_T0}, s{S_HP}, 5"); A(f"s_add_u32 s{S_T0}, s{S_T0}, s{S_WV}")
        A(f"s_lshl_b32 s{S_KP}, s{S_T0}, 11"); A(f"s_add_u32 s{S_KP}, s{S_KP}, {WS_KVP}")
        g = []
        for p in range(8):
            for i in range(2): g.append(I(f"buffer_load_dwordx4 {vr(64+8*p+4*i,4)}, v{VL16}, {sr(R_W,4)}, s{S_KP} offen offset:{1024*i} sc1", "kg"))
            if p < 7: g.append(f"s_add_u32 s{S_KP}, s{S_KP}, 8192")
        fq[0:0] = g
    hard[opt.kvchk] = kvgather
    for n in range(len(qun)):
        if n in hard: hard[n]()
        fq += ev.get(n, [])
        A.wait(lg=[("q", n)])
        nxt = qreads(n + 3)
        A.weave(qmf(n), (nxt, 2), (fq, 4))
        A.flush(nxt)
    A.flush(fq)
    A.stamp(6)
    A.wait(vm=["kg"])
    for stp in (32, 16, 8):
        for i in range(stp): A(f"v_add_f32 v{64+i}, v{64+i}, v{64+stp+i}")
    for i in range(4): A(f"v_cvt_pk_bf16_f32 v{64+i}, v{64+2*i}, v{64+2*i+1}")
    A(f"v_add_u32 v{T[0]}, {SP}, v{VL16}")
    A(f"s_lshl_b32 s{S_T0}, s{S_WV}, 10"); A(f"v_add_u32 v{T[1]}, s{S_T0}, v{T[0]}")
    A(f"ds_write_b128 v{T[1]}, {vr(64,4)}")
    A("s_mov_b32 exec_lo, 0"); A(f"v_mov_b32 v{VGT[0]}, v{VGT[1]}"); A("s_mov_b32 exec_lo, -1")
    A(f"s_lshl_b32 s{S_T1}, s{S_TB}, 8"); A(f"s_lshl_b32 s{S_T2}, s{S_HP}, 14"); A(f"s_add_u32 s{S_T1}, s{S_T1}, s{S_T2}"); A(f"s_add_u32 s{S_T1}, s{S_T1}, {WS_OMG}")
    A(f"v_lshlrev_b32 v{T[2]}, 2, v0")
    A(f"buffer_store_dword v{VGT[0]}, v{T[2]}, {sr(R_W,4)}, s{S_T1} offen sc1")
    A(f"s_mul_i32 s{S_O0}, s{S_TB}, 288"); A(f"s_lshl_b32 s{S_T2}, s{S_HP}, 1"); A(f"s_add_u32 s{S_O0}, s{S_O0}, s{S_T2}")
    A(f"s_add_u32 s{S_O0}, s{S_O0}, 56"); A(f"s_lshl_b32 s{S_O0}, s{S_O0}, 10")
    A(f"s_add_u32 s{S_O1}, s{S_O0}, {2*TB}")
    A.wait(lg="all")
    A("s_barrier")
    for i in (2, 3, 0, 1): A(I(f"ds_read_b128 {vr(KA+4*i,4)}, v{T[0]} offset:{1024*i}", "ka"))
    last = tile_post(3)
    for _ in range(24): A(last.pop(0))
    A.wait(lg="all")
    AO = [80, 96, 112, 160]
    def omf(t):
        b, hh = qt[t]; d = vr(AO[t], 16)
        return [f"v_mfma_f32_32x32x16_bf16 {d}, {vr(KA+(hh*2+s)*4,4)}, {vr(AQT[t]+4*s,4)}, {'0' if s == 0 else d}" for s in range(2)]
    A.weave(omf(0) + omf(1) + omf(2), (last, 6))
    A.flush(last)
    def opost(t):
        b, hh = qt[t]; r = AO[t]; d = 56 + 2 * (t & 1); f = []
        f += [f"v_mov_b32 v{d}, v{r+12}", f"v_mov_b32 v{d+1}, v{r+12}", "s_nop 1", f"v_permlane32_swap_b32 v{d}, v{d+1}", "s_nop 1",
              f"v_add_f32 v{d+1}, {EPS:#x}, v{d+1}", f"v_rcp_f32 v{d+1}, v{d+1}", "s_nop 0", f"v_mul_f32 v{d+1}, v{d+1}, v{VGT[b]+1}"]
        for jj in range(2):
            for i in range(8 * jj, 8 * jj + 8): f.append(f"v_mul_f32 v{r+i}, v{d+1}, v{r+i}")
            for i in range(4): f.append(f"v_cvt_pk_bf16_f32 v{r+8*jj+i}, v{r+8*jj+2*i}, v{r+8*jj+2*i+1}")
            if jj == 1: f.append(("s_mov_b32 exec_lo, 0", f"v_mov_b32 v{r+10}, 0", f"v_mov_b32 v{r+11}, 0", "s_mov_b32 exec_lo, -1"))
            f.append(f"buffer_store_dwordx4 {vr(r+8*jj,4)}, v{VOST}, {sr(R_W,4)}, s{(S_O0,S_O1)[b]} offen offset:{1024*hh+512*jj} sc1")
        return f
    A.nop(2)
    A(omf(3))
    for t in range(4): A(opost(t))
    A.stamp(7)
    A.wait(vm="all")
    set_flag(A, S_OF, VZ, VONE)
    if opt.stamps:
        A.stamp(8); write_stamps(A); diag_pad(A, "A")
    A("s_endpgm")

def helper(A):
    opt = A.opt
    A.vm = []; A.lg = []
    A.label("L_help")
    A(f"s_lshl_b32 s{S_T0}, s{S_WV}, 6")
    A(f"v_add_u32 v1, s{S_T0}, v0")
    A("v_lshlrev_b32 v4, 7, v1")
    A("v_mov_b32 v2, 0"); A("v_mov_b32 v3, 1")
    if opt.codepf:
        A(f"s_getpc_b64 {sr(S_PC,2)}")
        A.label("L_pc")
        A(f"s_sub_u32 s{S_PC}, s{S_PC}, L_pc-{NAME}_kernel"); A(f"s_subb_u32 s{S_PC+1}, s{S_PC+1}, 0")
        A(f"v_min_u32 v5, L_pc-{NAME}_kernel, v4")
        A(f"global_load_dword v6, v5, {sr(S_PC,2)}")
        A(f"v_add_u32 v5, 0x8000, v4"); A(f"v_min_u32 v5, L_pc-{NAME}_kernel, v5")
        A(f"global_load_dword v7, v5, {sr(S_PC,2)}")
    A("s_waitcnt lgkmcnt(0)")
    pf_setup(A, 30, 31, 32); A(pf_load(A, 30, 33)); A(pf_load(A, 31, 34))
    A("s_cmp_ge_u32 s2, 8"); A("s_cbranch_scc1 L_exit")
    srd(A, R_W, P_WS, WS_SIZE); srd(A, R_D, P_WD, 1792*896); srd(A, R_O, P_WO, 448*896)
    A(f"s_mul_i32 s{S_T0}, s2, {160*128}"); A(f"s_add_u32 s{S_T0}, s{S_T0}, {WS_FLAG}")
    A(f"v_min_u32 v8, {159*128}, v4")
    A(f"buffer_store_dword v2, v8, {sr(R_W,4)}, s{S_T0} offen sc1")
    A("s_waitcnt vmcnt(0)")
    A("s_barrier")
    A(f"s_cmp_lg_u32 s{S_WV}, 0"); A("s_cbranch_scc1 L_help2")
    A("s_lshl_b32 s3, s2, 2"); A("v_mov_b32 v2, s3")
    A("s_mov_b64 exec, 1")
    A(f"global_store_dword v2, v3, {sr(P_DBG,2)} sc1")
    A("s_mov_b64 exec, -1")
    A.label("L_help2")
    if opt.stamps:
        A("s_waitcnt vmcnt(0)"); A.stamp(8)
    if opt.b2pf:
        A(f"s_mul_i32 s{S_T0}, s2, {1568*128}")
        for i in range(7):
            if i == 6: A(f"v_min_u32 v9, {31*128}, v4")
            A(f"buffer_load_dword v{10+i}, v{9 if i == 6 else 4}, {sr(R_D,4)}, s{S_T0} offen")
            A(f"s_add_u32 s{S_T0}, s{S_T0}, {256*128}")
        A(f"s_mul_i32 s{S_T0}, s2, {392*128}")
        for i in range(2):
            if i == 1: A(f"v_min_u32 v9, {135*128}, v4")
            A(f"buffer_load_dword v{20+i}, v{9 if i == 1 else 4}, {sr(R_O,4)}, s{S_T0} offen")
            A(f"s_add_u32 s{S_T0}, s{S_T0}, {256*128}")
    if opt.stamps:
        A("s_waitcnt vmcnt(0)"); A.stamp(7); write_stamps(A)
    A.label("L_exit")
    A("s_endpgm")

def generate(**kw):
    d = dict(stamps=False, pf=1, first0=7, smode=0, rotd=3, xrot=1, norot2=0, pre0=4, rate0=8, blockmajor=1, b2pre=18, ring=5, p2pre=2,
             kfirst=4, kvflag=18, kvpoll=34, kvchk=42, outpol="", pad=None, padrole="F", codepf=1, b2pf=1)
    d.update(kw)
    opt = Opt(**d)
    A = Asm(opt)
    prologue(A); ffn(A); att(A); helper(A)
    ref = open(os.path.join(os.path.dirname(os.path.abspath(__file__)), "header.txt")).read()
    head = ref + "; @launch grid=(256,1,1) block=(256,1,1) lds=163840\n"
    head += f'.amdgcn_target "amdgcn-amd-amdhsa--gfx950"\n.text\n.globl {NAME}_kernel\n.p2align 8\n.type {NAME}_kernel,@function\n{NAME}_kernel:\n'
    tail = f"""
.section .rodata,"a"
.p2align 6
.amdhsa_kernel {NAME}_kernel
  .amdhsa_next_free_vgpr 512
  .amdhsa_next_free_sgpr 102
  .amdhsa_accum_offset 256
  .amdhsa_group_segment_fixed_size 0
  .amdhsa_kernarg_size 88
  .amdhsa_user_sgpr_count 2
  .amdhsa_user_sgpr_kernarg_segment_ptr 1
  .amdhsa_system_sgpr_workgroup_id_x 1
.end_amdhsa_kernel
"""
    return head + "\n".join(A.l) + tail

if __name__ == "__main__":
    out = sys.argv[1]
    kw = {}
    for a in sys.argv[2:]:
        k, v = a.split("=")
        kw[k] = int(v) if v.lstrip("-").isdigit() else v
    open(out, "w").write(generate(**kw))
```
